```python
import torch

def _softmax(x, axis=-1):
    return torch.softmax(x, dim=axis)
def _gelu(x):
    return torch.nn.functional.gelu(x, approximate="tanh")
def _silu(x):
    return torch.nn.functional.silu(x)
def _sigmoid(x):
    return torch.sigmoid(x)
def _layernorm(x, axis=-1, eps=1e-5):
    m = x.mean(dim=axis, keepdim=True)
    v = x.var(dim=axis, keepdim=True, unbiased=False)
    return (x - m) / torch.sqrt(v + eps)
def _scatter_add(tgt, idx, src, axis=0):
    return tgt.clone().index_add_(axis, idx, src)
def _segment_sum(src, seg, n):
    out = torch.zeros((n,) + src.shape[1:], dtype=src.dtype)
    return out.index_add_(0, seg, src)
def _pad(x, pw):
    flat = tuple(v for pair in reversed(pw) for v in pair)
    return torch.nn.functional.pad(x, flat)

kernel_name = 'standalone__structured_sparse_n_m__ragged'

def setup_inputs():

    _w = (lambda a: (lambda t: t.to(torch.bfloat16) if t.is_floating_point() else t)(torch.as_tensor(a)))
    B, S, D = 16, 512, 1024
    assert D % 4 == 0, "d_model must be divisible by M=4 for 2:4 sparsity"
    return {
        "x": _w((lambda *s: torch.randn(*s, dtype=torch.bfloat16) * 0.05)(B, S, D)),
        "w": _w((lambda *s: torch.randn(*s, dtype=torch.bfloat16) * 0.05)(D, D)),
        "b": _w((lambda *s: torch.randn(*s, dtype=torch.bfloat16) * 0.05)(D)),
    }

def reference(x, w, b):
    B, S, D = x.shape
    N, M = 2, 4
    G = D // M
    wg = w.reshape(G, M, D)
    mag = torch.abs(wg)
    order = torch.argsort(mag, 1)
    thr = (lambda x, i, axis: torch.take_along_dim(x, i, dim=axis))(mag, order[:, M - N:M - N + 1, :], 1)
    mask = (lambda x, dt: x.to(dt))(mag >= thr, w.dtype)
    wp = (wg * mask).reshape(D, D)
    return torch.einsum("bsd,df->bsf", x, wp) + b
```

```python
import sys

OUT = sys.argv[1] if len(sys.argv) > 1 else "standalone__structured_sparse_n_m__ragged.s"

L = []
def e(s=""):
    L.append(s)

HEADER = """; Kernarg layout for this problem (48 bytes, ptrs only, base s[0:1]):
; @launch kernel=prune_kernel grid=(256,1,1) block=(256,1,1) lds=0
; @launch kernel=gemm_kernel grid=(256,1,1) block=(512,1,1) lds=147456
.amdgcn_target "amdgcn-amd-amdhsa--gfx950"
.text
"""
e(HEADER)

e(""".globl prune_kernel
.p2align 8
.type prune_kernel,@function
prune_kernel:
    s_cmp_ge_u32 s2, 256
    s_cbranch_scc1 L_prune_done
    s_load_dwordx2 s[4:5], s[0:1], 8        ; w
    s_load_dwordx2 s[6:7], s[0:1], 40       ; ws
    s_lshl_b32 s3, s2, 8
    v_add_u32 v1, s3, v0                    ; t
    v_and_b32 v2, 511, v1
    v_lshrrev_b32 v3, 9, v1
    v_lshlrev_b32 v4, 14, v3                ; ko*8*2048
    v_lshl_add_u32 v4, v2, 2, v4            ; + np*4
    s_movk_i32 s16, 0x1000
    s_movk_i32 s17, 0x2000
    s_movk_i32 s18, 0x3000
    s_mov_b32 s19, 0x000f000f
    s_mov_b32 s20, 0x05040100
    s_mov_b32 s21, 0x07060302
    s_waitcnt lgkmcnt(0)
    s_mov_b32 s8, s4
    s_and_b32 s9, s5, 0xffff
    s_mov_b32 s10, 0x200000
    s_mov_b32 s11, 0x00020000
    s_mov_b32 s12, s6
    s_and_b32 s13, s7, 0xffff
    s_mov_b32 s14, 0x200000
    s_mov_b32 s15, 0x00020000
    buffer_load_dword v10, v4, s[8:11], 0 offen
    buffer_load_dword v11, v4, s[8:11], 0 offen offset:2048
    buffer_load_dword v12, v4, s[8:11], s16 offen
    buffer_load_dword v13, v4, s[8:11], s16 offen offset:2048
    buffer_load_dword v14, v4, s[8:11], s17 offen
    buffer_load_dword v15, v4, s[8:11], s17 offen offset:2048
    buffer_load_dword v16, v4, s[8:11], s18 offen
    buffer_load_dword v17, v4, s[8:11], s18 offen offset:2048
    v_lshrrev_b32 v5, 6, v2
    v_lshrrev_b32 v6, 3, v3                 ; s
    v_lshl_add_u32 v5, v5, 4, v6            ; nt*16+s
    v_lshlrev_b32 v5, 14, v5                ; *16384
    v_bfe_u32 v6, v2, 4, 2
    v_lshl_add_u32 v5, v6, 12, v5           ; + jp*4096
    v_bfe_u32 v6, v3, 1, 2                  ; kk
    v_lshl_add_u32 v5, v6, 10, v5           ; + kk*1024
    v_and_b32 v6, 1, v3                     ; hk
    v_lshl_add_u32 v5, v6, 9, v5            ; + hk*512
    v_bfe_u32 v6, v2, 3, 1                  ; h'
    v_lshl_add_u32 v5, v6, 6, v5            ; + 4h'*16
    v_bfe_u32 v6, v2, 1, 2                  ; a
    v_lshl_add_u32 v5, v6, 7, v5            ; + 8a*16
    v_and_b32 v6, 1, v2
    v_lshl_add_u32 v5, v6, 5, v5            ; + c*16 (c = 2*(np&1))
""")

def prune_group(r0, t0):
    m = [t0 + i for i in range(4)]
    h1, l1, h2, l2, thr = t0 + 4, t0 + 5, t0 + 6, t0 + 7, t0 + 8
    for i in range(4):
        e(f"    v_and_b32 v{m[i]}, 0x7fff7fff, v{r0+i}")
    e(f"    v_pk_max_u16 v{h1}, v{m[0]}, v{m[1]}")
    e(f"    v_pk_min_u16 v{l1}, v{m[0]}, v{m[1]}")
    e(f"    v_pk_max_u16 v{h2}, v{m[2]}, v{m[3]}")
    e(f"    v_pk_min_u16 v{l2}, v{m[2]}, v{m[3]}")
    e(f"    v_pk_min_u16 v{h1}, v{h1}, v{h2}")
    e(f"    v_pk_max_u16 v{l1}, v{l1}, v{l2}")
    e(f"    v_pk_max_u16 v{thr}, v{h1}, v{l1}")
    for i in range(4):
        e(f"    v_pk_sub_i16 v{m[i]}, v{m[i]}, v{thr}")
    for i in range(4):
        e(f"    v_pk_ashrrev_i16 v{m[i]}, s19, v{m[i]}")
    for i in range(4):
        e(f"    v_bfi_b32 v{r0+i}, v{m[i]}, 0, v{r0+i}")

e("    s_waitcnt vmcnt(4)")
prune_group(10, 20)
e("    s_waitcnt vmcnt(0)")
prune_group(14, 30)
for q in range(4):
    e(f"    v_perm_b32 v{40+q}, v{11+2*q}, v{10+2*q}, s20")
    e(f"    v_perm_b32 v{44+q}, v{11+2*q}, v{10+2*q}, s21")
e("""    buffer_store_dwordx4 v[40:43], v5, s[12:15], 0 offen
    buffer_store_dwordx4 v[44:47], v5, s[12:15], 0 offen offset:16
L_prune_done:
    s_endpgm
""")

STAGE = 49152
ACC = 128
def acc(i4, j):
    b = ACC + (i4 * 2 + j) * 16
    return f"v[{b}:{b+15}]"
def frag_regs(s):
    base = 64 + 24 * s
    W = [base, base + 4]
    X = [base + 8 + 4 * i for i in range(4)]
    return W, X
def r4(b):
    return f"v[{b}:{b+3}]"

e(""".globl gemm_kernel
.p2align 8
.type gemm_kernel,@function
gemm_kernel:
    s_cmp_ge_u32 s2, 256
    s_cbranch_scc1 L_gemm_done
    s_load_dwordx4 s[4:7], s[0:1], 0        ; x, w
    s_load_dwordx4 s[8:11], s[0:1], 16      ; b, out
    s_load_dwordx2 s[12:13], s[0:1], 40     ; ws
    v_lshrrev_b32 v1, 6, v0
    v_and_b32 v0, 63, v0                    ; lane
    s_and_b32 s14, s2, 7                    ; xcd
    s_lshr_b32 s15, s2, 3                   ; idx
    s_lshr_b32 s16, s15, 3
    s_lshl_b32 s14, s14, 2
    s_add_u32 s14, s14, s16                 ; m_tile
    s_and_b32 s15, s15, 7                   ; n_tile
    v_readfirstlane_b32 s16, v1
    s_waitcnt lgkmcnt(0)
    s_cmp_ge_u32 s16, 4
    s_cbranch_scc1 L_producer
""")

e("""    ; consumer: wm = s16>>1, wn = s16&1
    s_lshr_b32 s17, s16, 1                  ; wm
    s_and_b32 s18, s16, 1                   ; wn
    s_mov_b32 s20, s8
    s_and_b32 s21, s9, 0xffff
    s_movk_i32 s22, 0x800
    s_mov_b32 s23, 0x00020000
    s_mov_b32 s24, s10
    s_and_b32 s25, s11, 0xffff
    s_mov_b32 s26, 0x1000000
    s_mov_b32 s27, 0x00020000
    v_lshrrev_b32 v2, 5, v0                 ; h
    v_and_b32 v3, 31, v0                    ; l&31
    s_lshl_b32 s19, s15, 8
    s_lshl_b32 s28, s18, 7
    s_add_u32 s19, s19, s28                 ; (n_tile*128+wn*64)*2
    v_lshl_add_u32 v4, v2, 5, s19
    buffer_load_dwordx4 v[32:35], v4, s[20:23], 0 offen
    buffer_load_dwordx4 v[36:39], v4, s[20:23], 0 offen offset:16
    buffer_load_dwordx4 v[40:43], v4, s[20:23], 0 offen offset:64
    buffer_load_dwordx4 v[44:47], v4, s[20:23], 0 offen offset:80
    v_bfe_u32 v5, v0, 1, 3                  ; (l>>1)&7
    s_lshl_b32 s28, s17, 14
    v_lshl_add_u32 v6, v3, 7, s28           ; wm*16384 + (l&31)*128
""")
for kk in range(4):
    e(f"    v_or_b32 v7, {2*kk}, v2")
    e(f"    v_xor_b32 v7, v7, v5")
    e(f"    v_lshl_add_u32 v{16+kk}, v7, 4, v6")
e("""    ; W frag base: 32768 + wn*8192 + l*16
    s_lshl_b32 s28, s18, 13
    s_add_u32 s28, s28, 32768
    v_lshl_add_u32 v20, v0, 4, s28
    v_mov_b32 v8, v16
    v_mov_b32 v9, v17
    v_mov_b32 v10, v18
    v_mov_b32 v11, v19
    v_mov_b32 v12, v20
    s_mov_b32 s30, 0
    s_mov_b32 s31, 0
    s_waitcnt vmcnt(0)
""")
for j in range(2):
    for r in range(16):
        src = 32 + j * 8 + (r >> 1)
        for i4 in range(4):
            d = ACC + (i4 * 2 + j) * 16 + r
            if r & 1:
                e(f"    v_and_b32 v{d}, 0xffff0000, v{src}")
            else:
                e(f"    v_lshlrev_b32 v{d}, 16, v{src}")

def reads(s, kk):
    W, X = frag_regs(s)
    out = []
    out.append(f"    ds_read_b128 {r4(W[0])}, v12 offset:{kk*1024}")
    out.append(f"    ds_read_b128 {r4(X[0])}, v{8+kk}")
    out.append(f"    ds_read_b128 {r4(W[1])}, v12 offset:{4096+kk*1024}")
    out.append(f"    ds_read_b128 {r4(X[1])}, v{8+kk} offset:4096")
    out.append(f"    ds_read_b128 {r4(X[2])}, v{8+kk} offset:8192")
    out.append(f"    ds_read_b128 {r4(X[3])}, v{8+kk} offset:12288")
    return out

def step(s, rd, extra_after=None):
    W, X = frag_regs(s)
    order = [(0, 0), (0, 1), (1, 0), (1, 1), (2, 0), (2, 1), (3, 0), (3, 1)]
    rd = list(rd)
    for n, (i4, j) in enumerate(order):
        e(f"    v_mfma_f32_32x32x16_bf16 {acc(i4,j)}, {r4(W[j])}, {r4(X[i4])}, {acc(i4,j)}")
        for _ in range(2):
            if rd:
                e(rd.pop(0))
        if extra_after and n in extra_after:
            for x in extra_after[n]:
                e(x)

e("    s_barrier")
for x in reads(0, 0):
    e(x)
e("L_cons_loop:")
for kk in range(3):
    e("    s_waitcnt lgkmcnt(0)")
    step(kk & 1, reads((kk + 1) & 1, kk + 1))
e("    s_waitcnt lgkmcnt(0)")
e("    s_barrier")
e("""    s_add_u32 s30, s30, 49152
    s_cmp_eq_u32 s30, 147456
    s_cselect_b32 s30, 0, s30
    v_add_u32 v8, s30, v16
    v_add_u32 v12, s30, v20
    v_add_u32 v9, s30, v17
    v_add_u32 v10, s30, v18
    v_add_u32 v11, s30, v19
""")
step(1, reads(0, 0))
e("""    s_add_u32 s31, s31, 1
    s_cmp_lt_u32 s31, 15
    s_cbranch_scc1 L_cons_loop
""")
for kk in range(3):
    e("    s_waitcnt lgkmcnt(0)")
    step(kk & 1, reads((kk + 1) & 1, kk + 1))
e("    s_waitcnt lgkmcnt(0)")
step(1, [])
e("""    ; epilogue: region = 49152 + wave*16384
    s_lshl_b32 s28, s16, 14
    s_add_u32 s28, s28, 49152
    v_and_b32 v5, 7, v0                     ; l&7
    v_lshl_add_u32 v6, v3, 7, s28           ; region + (l&31)*128
    v_lshlrev_b32 v7, 1, v2                 ; 2h
""")
for j in range(2):
    for ee in range(2):
        e(f"    v_or_b32 v21, {4*j+ee}, v7")
        e(f"    v_xor_b32 v21, v21, v5")
        e(f"    v_lshl_add_u32 v{24+j*2+ee}, v21, 4, v6")
e("""    ; read addr: region + (l>>3)*128 + ((l&7)^((l>>3)&7))*16
    v_lshrrev_b32 v21, 3, v0
    v_and_b32 v22, 7, v21
    v_xor_b32 v22, v22, v5
    v_lshl_add_u32 v28, v21, 7, s28
    v_lshl_add_u32 v28, v22, 4, v28
    v_lshlrev_b32 v29, 11, v21
    v_lshl_add_u32 v29, v5, 4, v29
    s_lshl_b32 s32, s14, 19
    s_lshl_b32 s33, s17, 18
    s_add_u32 s32, s32, s33
    s_add_u32 s32, s32, s19
    s_nop 7
    s_nop 7
""")
t = 32
for i4 in range(4):
    for j in range(2):
        b = ACC + (i4 * 2 + j) * 16
        tb = 32 + ((i4 * 2 + j) & 3) * 8
        for q in range(8):
            e(f"    v_cvt_pk_bf16_f32 v{tb+q}, v{b+2*q}, v{b+2*q+1}")
        e(f"    ds_write_b128 v{24+j*2}, {r4(tb)} offset:{i4*4096}")
        e(f"    ds_write_b128 v{24+j*2+1}, {r4(tb+4)} offset:{i4*4096}")
e("    s_waitcnt lgkmcnt(0)")
for q in range(16):
    e(f"    ds_read_b128 {r4(64+4*q)}, v28 offset:{q*1024}")
for q in range(16):
    e(f"    s_waitcnt lgkmcnt({15-q})")
    e(f"    buffer_store_dwordx4 {r4(64+4*q)}, v29, s[24:27], s32 offen")
    if q < 15:
        e(f"    s_add_u32 s32, s32, 16384")
e("    s_endpgm")

e("""L_producer:
    s_sub_u32 s16, s16, 4                   ; p
    ; x SRD s[20:23]
    s_mov_b32 s20, s4
    s_and_b32 s21, s5, 0xffff
    s_mov_b32 s22, 0x1000000
    s_mov_b32 s23, 0x00020000
    s_mov_b32 s24, s12
    s_and_b32 s25, s13, 0xffff
    s_mov_b32 s26, 0x200000
    s_mov_b32 s27, 0x00020000
    v_lshrrev_b32 v2, 3, v0
    v_lshlrev_b32 v2, 11, v2
    v_and_b32 v3, 7, v0
    v_lshrrev_b32 v4, 4, v0                 ; L>>4 (0..3)
    v_xor_b32 v5, v3, v4
    v_lshl_add_u32 v8, v5, 4, v2            ; even
    v_or_b32 v4, 4, v4
    v_xor_b32 v5, v3, v4
    v_lshl_add_u32 v9, v5, 4, v2            ; odd
    v_lshlrev_b32 v10, 4, v0                ; W voffset
    s_lshl_b32 s32, s14, 19
    s_lshl_b32 s33, s16, 17
    s_add_u32 s32, s32, s33
    s_lshl_b32 s33, s15, 18
    s_lshl_b32 s34, s16, 12
    s_add_u32 s33, s33, s34
    s_lshl_b32 s35, s16, 13
    s_add_u32 s36, s34, 32768
    s_mov_b32 s30, 0
""")
def issue():
    e("    s_add_u32 m0, s30, s35")
    e("    s_mov_b32 s37, s32")
    for i in range(8):
        e(f"    buffer_load_dwordx4 v{8+(i&1)}, s[20:23], s37 offen lds")
        if i < 7:
            e("    s_add_u32 m0, m0, 0x400")
            e("    s_add_u32 s37, s37, 0x4000")
    e("    s_add_u32 m0, s30, s36")
    e("    s_add_u32 s32, s32, 128")
    for i in range(4):
        e(f"    buffer_load_dwordx4 v10, s[24:27], s33 offen offset:{i*1024} lds")
    e("    s_add_u32 s33, s33, 16384")
    e("    s_add_u32 s30, s30, 49152")
    e("    s_cmp_eq_u32 s30, 147456")
    e("    s_cselect_b32 s30, 0, s30")

for s in range(3):
    issue()
e("""    s_waitcnt vmcnt(24)
    s_barrier                               ; B_-1
    s_mov_b32 s31, 0
L_prod_loop:
    s_waitcnt vmcnt(12)
    s_barrier
""")
issue()
e("""    s_add_u32 s31, s31, 1
    s_cmp_lt_u32 s31, 13
    s_cbranch_scc1 L_prod_loop
    s_waitcnt vmcnt(12)
    s_barrier                               ; B_13
    s_waitcnt vmcnt(0)
    s_barrier                               ; B_14
L_gemm_done:
    s_endpgm
""")

e(""".section .rodata,"a"
.p2align 6
.amdhsa_kernel prune_kernel
  .amdhsa_next_free_vgpr 48
  .amdhsa_next_free_sgpr 32
  .amdhsa_accum_offset 48
  .amdhsa_group_segment_fixed_size 0
  .amdhsa_kernarg_size 48
  .amdhsa_user_sgpr_count 2
  .amdhsa_user_sgpr_kernarg_segment_ptr 1
  .amdhsa_system_sgpr_workgroup_id_x 1
.end_amdhsa_kernel
.p2align 6
.amdhsa_kernel gemm_kernel
  .amdhsa_next_free_vgpr 256
  .amdhsa_next_free_sgpr 48
  .amdhsa_accum_offset 256
  .amdhsa_group_segment_fixed_size 0
  .amdhsa_kernarg_size 48
  .amdhsa_user_sgpr_count 2
  .amdhsa_user_sgpr_kernarg_segment_ptr 1
  .amdhsa_system_sgpr_workgroup_id_x 1
.end_amdhsa_kernel
""")

open(OUT, "w").write("\n".join(L))
print("wrote", OUT)
```

```python
import sys

STAMP = "--stamp" in sys.argv
NOPF = "--nopf" in sys.argv
args = [a for a in sys.argv[1:] if not a.startswith("--")]
OUT = args[0] if args else "standalone__structured_sparse_n_m__ragged.s"
KNAME = "standalone__structured_sparse_n_m__ragged_kernel"

L = []
def e(s=""):
    L.append(s)

e(f"""; Kernarg layout for this problem (48 bytes, ptrs only, base s[0:1]):
; @launch grid=(256,1,1) block=(512,1,1) lds=147456
.amdgcn_target "amdgcn-amd-amdhsa--gfx950"
.text
.globl {KNAME}
.p2align 8
.type {KNAME},@function
{KNAME}:""")

ACC = 128
def acc(i4, j):
    b = ACC + (i4 * 2 + j) * 16
    return f"v[{b}:{b+15}]"
def frag_regs(s):
    base = 64 + 24 * s
    W = [base, base + 4]
    X = [base + 8 + 4 * i for i in range(4)]
    return W, X
def r4(b):
    return f"v[{b}:{b+3}]"
def r2(b):
    return f"v[{b}:{b+1}]"

e("""    s_cmp_ge_u32 s2, 256
    s_cbranch_scc1 L_done
    s_load_dwordx4 s[4:7], s[0:1], 0        ; x, w
    s_load_dwordx4 s[8:11], s[0:1], 16      ; b, out
    s_load_dwordx2 s[12:13], s[0:1], 40     ; ws
    v_lshrrev_b32 v1, 6, v0
    v_and_b32 v0, 63, v0                    ; lane
    s_and_b32 s14, s2, 7                    ; xcd
    s_lshr_b32 s15, s2, 3                   ; idx
    s_lshr_b32 s16, s15, 3
    s_lshl_b32 s14, s14, 2
    s_add_u32 s14, s14, s16                 ; m_tile
    s_and_b32 s15, s15, 7                   ; n_tile
    v_readfirstlane_b32 s16, v1
    s_waitcnt lgkmcnt(0)
    s_mov_b32 s48, s4
    s_and_b32 s49, s5, 0xffff
    s_mov_b32 s50, 0x1000000
    s_mov_b32 s51, 0x00020000
    s_mov_b32 s52, s6
    s_and_b32 s53, s7, 0xffff
    s_mov_b32 s54, 0x200000
    s_mov_b32 s55, 0x00020000
    s_cmp_ge_u32 s16, 4
    s_cbranch_scc1 L_producer
""")

if STAMP:
    e("    s_memtime s[40:41]")
    e("    s_memrealtime s[46:47]")
    e("    v_mov_b32 v30, 0")
e("""    s_setprio 3
    s_lshr_b32 s17, s16, 1                  ; wm
    s_and_b32 s18, s16, 1                   ; wn
    v_lshrrev_b32 v2, 5, v0                 ; h
    v_and_b32 v3, 31, v0                    ; l&31
""")
e("""    ; bias SRD s[20:23]
    s_mov_b32 s20, s8
    s_and_b32 s21, s9, 0xffff
    s_movk_i32 s22, 0x800
    s_mov_b32 s23, 0x00020000
    s_mov_b32 s24, s10
    s_and_b32 s25, s11, 0xffff
    s_mov_b32 s26, 0x1000000
    s_mov_b32 s27, 0x00020000
    s_lshl_b32 s19, s15, 8
    s_lshl_b32 s28, s18, 7
    s_add_u32 s19, s19, s28                 ; (n_tile*128+wn*64)*2
    v_lshl_add_u32 v4, v2, 5, s19
    buffer_load_dwordx4 v[32:35], v4, s[20:23], 0 offen
    buffer_load_dwordx4 v[36:39], v4, s[20:23], 0 offen offset:16
    buffer_load_dwordx4 v[40:43], v4, s[20:23], 0 offen offset:64
    buffer_load_dwordx4 v[44:47], v4, s[20:23], 0 offen offset:80
""")
if not NOPF:
    e("""    ; L2 prefetch of x: rows m_tile*256 + n_tile*32 + (l&31), line = (q*4+wave)*2 + h
    s_lshl_b32 s28, s14, 19
    s_lshl_b32 s29, s15, 16
    s_add_u32 s28, s28, s29
    s_lshl_b32 s29, s16, 8
    s_add_u32 s28, s28, s29
    v_lshlrev_b32 v4, 11, v3
    v_lshl_add_u32 v4, v2, 7, v4
    buffer_load_dword v31, v4, s[48:51], s28 offen
    buffer_load_dword v31, v4, s[48:51], s28 offen offset:1024
    s_and_b32 s28, s14, 3
    s_lshl_b32 s28, s28, 11
    s_lshl_b32 s29, s15, 8
    s_add_u32 s28, s28, s29
    s_lshl_b32 s29, s16, 18
    s_add_u32 s28, s28, s29
    s_add_u32 s29, s28, 0x100000
    v_lshlrev_b32 v4, 13, v3
    v_lshl_add_u32 v4, v2, 7, v4
    buffer_load_dword v31, v4, s[52:55], s28 offen
    buffer_load_dword v31, v4, s[52:55], s29 offen
""")
e("""    ; x frag base addresses: wm*16384 + (l&31)*128 + ((2kk+h) ^ ((l>>1)&7))*16
    v_bfe_u32 v5, v0, 1, 3                  ; (l>>1)&7
    s_lshl_b32 s28, s17, 14
    v_lshl_add_u32 v6, v3, 7, s28           ; wm*16384 + (l&31)*128
""")
for kk in range(4):
    e(f"    v_or_b32 v7, {2*kk}, v2")
    e(f"    v_xor_b32 v7, v7, v5")
    e(f"    v_lshl_add_u32 v{16+kk}, v7, 4, v6")
e("""    ; W tr-read base: 32768 + (8h + r)*256 + ((2wn+j)^r)*64 + nq*8 ; r=(l&15)>>2, qi=4*((l>>4)&1)+(l&3), nq=4*(qi&1)+(qi>>1)
    v_bfe_u32 v5, v0, 2, 2                  ; r
    v_lshl_add_u32 v6, v2, 3, v5            ; 8h + r
    v_lshlrev_b32 v6, 8, v6
    v_add_u32 v6, 0x8000, v6
    v_and_b32 v7, 1, v0                     ; qi&1
    v_lshlrev_b32 v7, 2, v7                 ; 4*(qi&1)
    v_bfe_u32 v21, v0, 1, 1                 ; (l>>1)&1
    v_bfe_u32 v22, v0, 4, 1                 ; gi
    v_lshl_add_u32 v21, v22, 1, v21
    v_add_u32 v7, v7, v21                   ; nq
    v_lshl_add_u32 v6, v7, 3, v6
    s_lshl_b32 s28, s18, 1                  ; 2wn
    v_xor_b32 v7, s28, v5
    v_lshl_add_u32 v20, v7, 6, v6           ; j=0
    s_add_u32 s28, s28, 1
    v_xor_b32 v7, s28, v5
    v_lshl_add_u32 v21, v7, 6, v6           ; j=1
    v_mov_b32 v8, v16
    v_mov_b32 v9, v17
    v_mov_b32 v10, v18
    v_mov_b32 v11, v19
    v_mov_b32 v12, v20
    v_mov_b32 v13, v21
    s_mov_b32 s30, 0
    s_mov_b32 s31, 0
""")
e("    s_waitcnt vmcnt(%d)" % (0 if NOPF else 4))
for j in range(2):
    for r in range(16):
        src = 32 + j * 8 + (r >> 1)
        for i4 in range(4):
            d = ACC + (i4 * 2 + j) * 16 + r
            if r & 1:
                e(f"    v_and_b32 v{d}, 0xffff0000, v{src}")
            else:
                e(f"    v_lshlrev_b32 v{d}, 16, v{src}")

def reads(s, kk):
    W, X = frag_regs(s)
    out = []
    out.append(f"    ds_read_b64_tr_b16 {r2(W[0])}, v12 offset:{kk*4096}")
    out.append(f"    ds_read_b64_tr_b16 {r2(W[0]+2)}, v12 offset:{kk*4096+1024}")
    out.append(f"    ds_read_b128 {r4(X[0])}, v{8+kk}")
    out.append(f"    ds_read_b64_tr_b16 {r2(W[1])}, v13 offset:{kk*4096}")
    out.append(f"    ds_read_b64_tr_b16 {r2(W[1]+2)}, v13 offset:{kk*4096+1024}")
    out.append(f"    ds_read_b128 {r4(X[1])}, v{8+kk} offset:4096")
    out.append(f"    ds_read_b128 {r4(X[2])}, v{8+kk} offset:8192")
    out.append(f"    ds_read_b128 {r4(X[3])}, v{8+kk} offset:12288")
    return out

def step(s, rd):
    W, X = frag_regs(s)
    order = [(0, 0), (0, 1), (1, 0), (1, 1), (2, 0), (2, 1), (3, 0), (3, 1)]
    rd = list(rd)
    per = [3, 3, 2, 0, 0, 0, 0, 0]
    for n, (i4, j) in enumerate(order):
        e(f"    v_mfma_f32_32x32x16_bf16 {acc(i4,j)}, {r4(W[j])}, {r4(X[i4])}, {acc(i4,j)}")
        for _ in range(per[n]):
            if rd:
                e(rd.pop(0))

if STAMP:
    e("    s_waitcnt lgkmcnt(0)")
    e("    v_writelane_b32 v30, s40, 20")
    e("    v_writelane_b32 v30, s46, 24")
e("    s_barrier")
if STAMP:
    e("    s_memtime s[40:41]")
    e("    s_waitcnt lgkmcnt(0)")
    e("    v_writelane_b32 v30, s40, 21")
for x in reads(0, 0):
    e(x)
e("L_cons_loop:")
for kk in range(3):
    e("    s_waitcnt lgkmcnt(0)")
    step(kk & 1, reads((kk + 1) & 1, kk + 1))
e("    s_waitcnt lgkmcnt(0)")
e("    s_barrier")
if STAMP:
    e("    s_memtime s[40:41]")
    e("    s_memrealtime s[42:43]")
e("""    s_add_u32 s30, s30, 49152
    s_cmp_eq_u32 s30, 147456
    s_cselect_b32 s30, 0, s30
    v_add_u32 v12, s30, v20
    v_add_u32 v8, s30, v16
    v_add_u32 v13, s30, v21
    v_add_u32 v9, s30, v17
    v_add_u32 v10, s30, v18
    v_add_u32 v11, s30, v19
""")
step(1, reads(0, 0))
if STAMP:
    e("    s_waitcnt lgkmcnt(0)")
    e("    s_mov_b32 m0, s31")
    e("    s_nop 3")
    e("    v_writelane_b32 v30, s40, m0")
    e("    s_add_u32 m0, s31, 32")
    e("    s_nop 3")
    e("    v_writelane_b32 v30, s42, m0")
e("""    s_add_u32 s31, s31, 1
    s_cmp_lt_u32 s31, 15
    s_cbranch_scc1 L_cons_loop
""")
for kk in range(3):
    e("    s_waitcnt lgkmcnt(0)")
    step(kk & 1, reads((kk + 1) & 1, kk + 1))
e("    s_waitcnt lgkmcnt(0)")
step(1, [])
if STAMP:
    e("    s_memtime s[40:41]")
    e("    s_waitcnt lgkmcnt(0)")
    e("    v_writelane_b32 v30, s40, 22")
e("""    ; epilogue: region = 49152 + wave*16384
    s_lshl_b32 s28, s16, 14
    s_add_u32 s28, s28, 49152
    v_and_b32 v5, 7, v0                     ; l&7
    v_lshl_add_u32 v6, v3, 7, s28           ; region + (l&31)*128
    v_lshlrev_b32 v7, 1, v2                 ; 2h
""")
for j in range(2):
    for ee in range(2):
        e(f"    v_or_b32 v21, {4*j+ee}, v7")
        e(f"    v_xor_b32 v21, v21, v5")
        e(f"    v_lshl_add_u32 v{24+j*2+ee}, v21, 4, v6")
e("""    v_lshrrev_b32 v21, 3, v0
    v_and_b32 v22, 7, v21
    v_xor_b32 v22, v22, v5
    v_lshl_add_u32 v28, v21, 7, s28
    v_lshl_add_u32 v28, v22, 4, v28
    v_lshlrev_b32 v29, 11, v21
    v_lshl_add_u32 v29, v5, 4, v29
    s_lshl_b32 s32, s14, 19
    s_lshl_b32 s33, s17, 18
    s_add_u32 s32, s32, s33
    s_add_u32 s32, s32, s19
    s_nop 7
    s_nop 7
""")
for i4 in range(4):
    for j in range(2):
        b = ACC + (i4 * 2 + j) * 16
        tb = 32 + ((i4 * 2 + j) & 3) * 8
        for q in range(8):
            e(f"    v_cvt_pk_bf16_f32 v{tb+q}, v{b+2*q}, v{b+2*q+1}")
        e(f"    ds_write_b128 v{24+j*2}, {r4(tb)} offset:{i4*4096}")
        e(f"    ds_write_b128 v{24+j*2+1}, {r4(tb+4)} offset:{i4*4096}")
e("    s_waitcnt lgkmcnt(0)")
for q in range(16):
    e(f"    ds_read_b128 {r4(64+4*q)}, v28 offset:{q*1024}")
for q in range(16):
    e(f"    s_waitcnt lgkmcnt({15-q})")
    e(f"    buffer_store_dwordx4 {r4(64+4*q)}, v29, s[24:27], s32 offen")
    if q < 15:
        e(f"    s_add_u32 s32, s32, 16384")
if STAMP:
    e("""    s_waitcnt vmcnt(0)
    s_memtime s[40:41]
    s_memrealtime s[46:47]
    s_waitcnt lgkmcnt(0)
    v_writelane_b32 v30, s40, 23
    v_writelane_b32 v30, s46, 25
    s_cmp_lg_u32 s16, 0
    s_cbranch_scc1 L_nostamp
    s_mov_b32 s20, s12
    s_and_b32 s21, s13, 0xffff
    s_mov_b32 s22, 0x1000000
    s_mov_b32 s23, 0x00020000
    s_lshl_b32 s28, s2, 8
    s_add_u32 s28, s28, 0x400000
    v_lshlrev_b32 v31, 2, v0
    buffer_store_dword v30, v31, s[20:23], s28 offen
L_nostamp:""")
e("    s_endpgm")

e("""L_producer:
    s_sub_u32 s16, s16, 4                   ; p
    s_mov_b32 s19, 0x000f000f
    v_lshrrev_b32 v2, 3, v0
    v_lshlrev_b32 v2, 11, v2
    v_and_b32 v3, 7, v0
    v_lshrrev_b32 v4, 4, v0                 ; L>>4 (0..3)
    v_xor_b32 v5, v3, v4
    v_lshl_add_u32 v8, v5, 4, v2            ; even
    v_or_b32 v6, 4, v4
    v_xor_b32 v5, v3, v6
    v_lshl_add_u32 v9, v5, 4, v2            ; odd
    s_lshl_b32 s28, s16, 2
    v_add_u32 v5, s28, v4                   ; g
    v_and_b32 v6, 15, v0                    ; c
    v_lshlrev_b32 v10, 13, v5
    v_lshl_add_u32 v10, v6, 4, v10
    v_add_u32 v11, 0x1000, v10
    v_lshrrev_b32 v7, 2, v6                 ; c>>2
    v_and_b32 v12, 3, v6
    v_lshlrev_b32 v12, 4, v12
    v_lshl_add_u32 v12, v5, 10, v12         ; g*1024 + (c&3)*16
    v_add_u32 v12, 0x8000, v12
""")
for r in range(4):
    e(f"    v_xor_b32 v13, {r}, v7")
    e(f"    v_lshl_add_u32 v{16+r}, v13, 6, v12")
    if r:
        e(f"    v_add_u32 v{16+r}, {r*256}, v{16+r}")
e("""    ; s32 = global x offset: (m_tile*256 + p*64)*2048 ; advancing 128 per stage
    s_lshl_b32 s32, s14, 19
    s_lshl_b32 s33, s16, 17
    s_add_u32 s32, s32, s33
    s_lshl_b32 s33, s15, 8
    s_lshl_b32 s35, s16, 13
    s_mov_b32 s30, 0
    s_mov_b32 s34, 0
""")
RS = [64, 80]
TMP = 96
def issueX():
    e("    s_add_u32 m0, s30, s35")
    e("    s_mov_b32 s37, s32")
    for i in range(8):
        e(f"    buffer_load_dwordx4 v{8+(i&1)}, s[48:51], s37 offen lds")
        if i < 7:
            e("    s_add_u32 m0, m0, 0x400")
            e("    s_add_u32 s37, s37, 0x4000")
    e("    s_add_u32 s32, s32, 128")
    e("    s_add_u32 s30, s30, 49152")
    e("    s_cmp_eq_u32 s30, 147456")
    e("    s_cselect_b32 s30, 0, s30")
def issueR(st):
    b = RS[st]
    e(f"    buffer_load_dwordx4 {r4(b)}, v10, s[52:55], s33 offen")
    e(f"    buffer_load_dwordx4 {r4(b+4)}, v10, s[52:55], s33 offen offset:2048")
    e(f"    buffer_load_dwordx4 {r4(b+8)}, v11, s[52:55], s33 offen")
    e(f"    buffer_load_dwordx4 {r4(b+12)}, v11, s[52:55], s33 offen offset:2048")
    e("    s_add_u32 s33, s33, 0x20000")
def pruneW(st):
    b = RS[st]
    R = lambda r, d: b + 4 * r + d
    M = lambda r, d: TMP + 4 * r + d
    H1 = lambda d: TMP + 16 + d
    L1 = lambda d: TMP + 20 + d
    H2 = lambda d: TMP + 24 + d
    L2 = lambda d: TMP + 28 + d
    for r in range(4):
        e(f"    v_add_u32 v{20+r}, s34, v{16+r}")
    for r in range(4):
        for d in range(4):
            e(f"    v_and_b32 v{M(r,d)}, 0x7fff7fff, v{R(r,d)}")
    for d in range(4):
        e(f"    v_pk_max_u16 v{H1(d)}, v{M(0,d)}, v{M(1,d)}")
    for d in range(4):
        e(f"    v_pk_min_u16 v{L1(d)}, v{M(0,d)}, v{M(1,d)}")
    for d in range(4):
        e(f"    v_pk_max_u16 v{H2(d)}, v{M(2,d)}, v{M(3,d)}")
    for d in range(4):
        e(f"    v_pk_min_u16 v{L2(d)}, v{M(2,d)}, v{M(3,d)}")
    for d in range(4):
        e(f"    v_pk_min_u16 v{H1(d)}, v{H1(d)}, v{H2(d)}")
    for d in range(4):
        e(f"    v_pk_max_u16 v{L1(d)}, v{L1(d)}, v{L2(d)}")
    for d in range(4):
        e(f"    v_pk_max_u16 v{H1(d)}, v{H1(d)}, v{L1(d)}")
    for r in range(4):
        for d in range(4):
            e(f"    v_pk_sub_i16 v{M(r,d)}, v{M(r,d)}, v{H1(d)}")
        for d in range(4):
            e(f"    v_pk_ashrrev_i16 v{M(r,d)}, s19, v{M(r,d)}")
        for d in range(4):
            e(f"    v_bfi_b32 v{M(r,d)}, v{M(r,d)}, 0, v{R(r,d)}")
        e(f"    ds_write_b128 v{20+r}, {r4(M(r,0))}")
    e("    s_add_u32 s34, s34, 49152")
    e("    s_cmp_eq_u32 s34, 147456")
    e("    s_cselect_b32 s34, 0, s34")

issueR(0); issueR(1); issueX(); issueX()
e("    s_waitcnt vmcnt(20)")
pruneW(0); issueR(0)
e("    s_waitcnt vmcnt(20)")
pruneW(1); issueR(1)
e("    s_waitcnt vmcnt(16) lgkmcnt(0)")
e("    s_barrier                               ; B_-1")
issueX()
e("    s_waitcnt vmcnt(12)")
pruneW(0); issueR(0)
e("    s_waitcnt lgkmcnt(0)")
e("    s_barrier                               ; B_0")
e("    s_mov_b32 s31, 0")
e("L_prod_loop:")
for half in (1, 0):
    issueX()
    e("    s_waitcnt vmcnt(20)")
    pruneW(half); issueR(half)
    e("    s_waitcnt vmcnt(16) lgkmcnt(0)")
    e("    s_barrier")
e("""    s_add_u32 s31, s31, 1
    s_cmp_lt_u32 s31, 5
    s_cbranch_scc1 L_prod_loop
""")
issueX()
e("    s_waitcnt vmcnt(20)")
pruneW(1); issueR(1)
e("    s_waitcnt vmcnt(16) lgkmcnt(0)")
e("    s_barrier                               ; B_11")
issueX()
e("    s_waitcnt vmcnt(20)")
pruneW(0)
e("    s_waitcnt vmcnt(12) lgkmcnt(0)")
e("    s_barrier                               ; B_12")
issueX()
e("    s_waitcnt vmcnt(16)")
pruneW(1)
e("    s_waitcnt vmcnt(8) lgkmcnt(0)")
e("    s_barrier                               ; B_13")
e("    s_waitcnt vmcnt(0)")
e("    s_barrier                               ; B_14")
e("L_done:")
e("    s_endpgm")

e(f""".section .rodata,"a"
.p2align 6
.amdhsa_kernel {KNAME}
  .amdhsa_next_free_vgpr 256
  .amdhsa_next_free_sgpr 64
  .amdhsa_accum_offset 256
  .amdhsa_group_segment_fixed_size 0
  .amdhsa_kernarg_size 48
  .amdhsa_user_sgpr_count 2
  .amdhsa_user_sgpr_kernarg_segment_ptr 1
  .amdhsa_system_sgpr_workgroup_id_x 1
.end_amdhsa_kernel
""")

open(OUT, "w").write("\n".join(L))
print("wrote", OUT)
```

```python
import sys

STAMP = "--stamp" in sys.argv
NOPF = "--nopf" in sys.argv
args = [a for a in sys.argv[1:] if not a.startswith("--")]
OUT = args[0] if args else "standalone__structured_sparse_n_m__ragged.s"
KNAME = "standalone__structured_sparse_n_m__ragged_kernel"

L = []
def e(s=""):
    L.append(s)

e(f"""; Kernarg layout for this problem (48 bytes, ptrs only, base s[0:1]):
; @launch grid=(256,1,1) block=(512,1,1) lds=147456
.amdgcn_target "amdgcn-amd-amdhsa--gfx950"
.text
.globl {KNAME}
.p2align 8
.type {KNAME},@function
{KNAME}:""")

ACC = 128
def acc(i4, j):
    b = ACC + (i4 * 2 + j) * 16
    return f"v[{b}:{b+15}]"
def frag_regs(s):
    base = 64 + 24 * s
    W = [base, base + 4]
    X = [base + 8 + 4 * i for i in range(4)]
    return W, X
def r4(b):
    return f"v[{b}:{b+3}]"
def r2(b):
    return f"v[{b}:{b+1}]"

NOLOC = "--noloc" in sys.argv
e("""    s_cmp_ge_u32 s2, 256
    s_cbranch_scc1 L_done
    s_load_dwordx4 s[4:7], s[0:1], 0        ; x, w
    s_load_dwordx4 s[8:11], s[0:1], 16      ; b, out
    s_load_dwordx2 s[12:13], s[0:1], 40     ; ws
    v_lshrrev_b32 v1, 6, v0
    v_and_b32 v0, 63, v0                    ; lane
    s_and_b32 s14, s2, 7                    ; xcd
    s_lshr_b32 s15, s2, 3                   ; idx
    s_lshr_b32 s16, s15, 3
    s_lshl_b32 s14, s14, 2
    s_add_u32 s14, s14, s16                 ; m_tile
    s_and_b32 s15, s15, 7                   ; n_tile
    v_readfirstlane_b32 s16, v1
""")
if NOLOC:
    e("    s_lshr_b32 s14, s2, 3")
    e("    s_and_b32 s15, s2, 7")
e("""    s_waitcnt lgkmcnt(0)
    s_mov_b32 s48, s4
    s_and_b32 s49, s5, 0xffff
    s_mov_b32 s50, 0x1000000
    s_mov_b32 s51, 0x00020000
    s_mov_b32 s52, s6
    s_and_b32 s53, s7, 0xffff
    s_mov_b32 s54, 0x200000
    s_mov_b32 s55, 0x00020000
    s_cmp_ge_u32 s16, 4
    s_cbranch_scc1 L_producer
""")

if STAMP:
    e("    s_memtime s[40:41]")
    e("    s_memrealtime s[46:47]")
    e("    v_mov_b32 v30, 0")
e("""    s_setprio 3
    s_lshr_b32 s17, s16, 1                  ; wm
    s_and_b32 s18, s16, 1                   ; wn
    v_lshrrev_b32 v2, 5, v0                 ; h
    v_and_b32 v3, 31, v0                    ; l&31
""")
e("""    ; bias SRD s[20:23]
    s_mov_b32 s20, s8
    s_and_b32 s21, s9, 0xffff
    s_movk_i32 s22, 0x800
    s_mov_b32 s23, 0x00020000
    s_mov_b32 s24, s10
    s_and_b32 s25, s11, 0xffff
    s_mov_b32 s26, 0x1000000
    s_mov_b32 s27, 0x00020000
    s_lshl_b32 s19, s15, 8
    s_lshl_b32 s28, s18, 7
    s_add_u32 s19, s19, s28                 ; (n_tile*128+wn*64)*2
    v_lshl_add_u32 v4, v2, 5, s19
    buffer_load_dwordx4 v[32:35], v4, s[20:23], 0 offen
    buffer_load_dwordx4 v[36:39], v4, s[20:23], 0 offen offset:16
    buffer_load_dwordx4 v[40:43], v4, s[20:23], 0 offen offset:64
    buffer_load_dwordx4 v[44:47], v4, s[20:23], 0 offen offset:80
""")
if not NOPF:
    e("""    ; L2 prefetch of x: rows m_tile*256 + n_tile*32 + (l&31), line = (q*4+wave)*2 + h
    s_lshl_b32 s28, s14, 19
    s_lshl_b32 s29, s15, 16
    s_add_u32 s28, s28, s29
    s_lshl_b32 s29, s16, 8
    s_add_u32 s28, s28, s29
    v_lshlrev_b32 v4, 11, v3
    v_lshl_add_u32 v4, v2, 7, v4
    buffer_load_dword v31, v4, s[48:51], s28 offen
    buffer_load_dword v31, v4, s[48:51], s28 offen offset:1024
    s_and_b32 s28, s14, 3
    s_lshl_b32 s28, s28, 11
    s_lshl_b32 s29, s15, 8
    s_add_u32 s28, s28, s29
    s_lshl_b32 s29, s16, 18
    s_add_u32 s28, s28, s29
    s_add_u32 s29, s28, 0x100000
    v_lshlrev_b32 v4, 13, v3
    v_lshl_add_u32 v4, v2, 7, v4
    buffer_load_dword v31, v4, s[52:55], s28 offen
    buffer_load_dword v31, v4, s[52:55], s29 offen
""")
e("""    ; x frag base addresses: wm*16384 + (l&31)*128 + ((2kk+h) ^ ((l>>1)&7))*16
    v_bfe_u32 v5, v0, 1, 3                  ; (l>>1)&7
    s_lshl_b32 s28, s17, 14
    v_lshl_add_u32 v6, v3, 7, s28           ; wm*16384 + (l&31)*128
""")
for kk in range(4):
    e(f"    v_or_b32 v7, {2*kk}, v2")
    e(f"    v_xor_b32 v7, v7, v5")
    e(f"    v_lshl_add_u32 v{16+kk}, v7, 4, v6")
e("""    ; W tr-read base: 32768 + (8h + r)*256 + ((2wn+j)^r)*64 + nq*8 ; r=(l&15)>>2, qi=4*((l>>4)&1)+(l&3), nq=4*(qi&1)+(qi>>1)
    v_bfe_u32 v5, v0, 2, 2                  ; r
    v_lshl_add_u32 v6, v2, 3, v5            ; 8h + r
    v_lshlrev_b32 v6, 8, v6
    v_add_u32 v6, 0x8000, v6
    v_and_b32 v7, 1, v0                     ; qi&1
    v_lshlrev_b32 v7, 2, v7                 ; 4*(qi&1)
    v_bfe_u32 v21, v0, 1, 1                 ; (l>>1)&1
    v_bfe_u32 v22, v0, 4, 1                 ; gi
    v_lshl_add_u32 v21, v22, 1, v21
    v_add_u32 v7, v7, v21                   ; nq
    v_lshl_add_u32 v6, v7, 3, v6
    s_lshl_b32 s28, s18, 1                  ; 2wn
    v_xor_b32 v7, s28, v5
    v_lshl_add_u32 v20, v7, 6, v6           ; j=0
    s_add_u32 s28, s28, 1
    v_xor_b32 v7, s28, v5
    v_lshl_add_u32 v21, v7, 6, v6           ; j=1
    v_mov_b32 v8, v16
    v_mov_b32 v9, v17
    v_mov_b32 v10, v18
    v_mov_b32 v11, v19
    v_mov_b32 v12, v20
    v_mov_b32 v13, v21
    s_mov_b32 s30, 0
    s_mov_b32 s31, 0
""")
e("    s_waitcnt vmcnt(%d)" % (0 if NOPF else 4))
for j in range(2):
    for r in range(16):
        src = 32 + j * 8 + (r >> 1)
        for i4 in range(4):
            d = ACC + (i4 * 2 + j) * 16 + r
            if r & 1:
                e(f"    v_and_b32 v{d}, 0xffff0000, v{src}")
            else:
                e(f"    v_lshlrev_b32 v{d}, 16, v{src}")

def reads(s, kk):
    W, X = frag_regs(s)
    out = []
    out.append(f"    ds_read_b64_tr_b16 {r2(W[0])}, v12 offset:{kk*4096}")
    out.append(f"    ds_read_b64_tr_b16 {r2(W[0]+2)}, v12 offset:{kk*4096+1024}")
    out.append(f"    ds_read_b128 {r4(X[0])}, v{8+kk}")
    out.append(f"    ds_read_b64_tr_b16 {r2(W[1])}, v13 offset:{kk*4096}")
    out.append(f"    ds_read_b64_tr_b16 {r2(W[1]+2)}, v13 offset:{kk*4096+1024}")
    out.append(f"    ds_read_b128 {r4(X[1])}, v{8+kk} offset:4096")
    out.append(f"    ds_read_b128 {r4(X[2])}, v{8+kk} offset:8192")
    out.append(f"    ds_read_b128 {r4(X[3])}, v{8+kk} offset:12288")
    return out

def step(s, rd):
    W, X = frag_regs(s)
    order = [(0, 0), (0, 1), (1, 0), (1, 1), (2, 0), (2, 1), (3, 0), (3, 1)]
    rd = list(rd)
    per = [3, 3, 2, 0, 0, 0, 0, 0]
    for n, (i4, j) in enumerate(order):
        e(f"    v_mfma_f32_32x32x16_bf16 {acc(i4,j)}, {r4(W[j])}, {r4(X[i4])}, {acc(i4,j)}")
        for _ in range(per[n]):
            if rd:
                e(rd.pop(0))

if STAMP:
    e("    s_waitcnt lgkmcnt(0)")
    e("    v_writelane_b32 v30, s40, 20")
    e("    v_writelane_b32 v30, s46, 24")
e("    s_barrier")
if STAMP:
    e("    s_memtime s[40:41]")
    e("    s_waitcnt lgkmcnt(0)")
    e("    v_writelane_b32 v30, s40, 21")
for x in reads(0, 0):
    e(x)
e("L_cons_loop:")
for kk in range(3):
    e("    s_waitcnt lgkmcnt(0)")
    step(kk & 1, reads((kk + 1) & 1, kk + 1))
e("    s_waitcnt lgkmcnt(0)")
e("    s_barrier")
if STAMP:
    e("    s_memtime s[40:41]")
    e("    s_memrealtime s[42:43]")
e("""    s_add_u32 s30, s30, 49152
    s_cmp_eq_u32 s30, 147456
    s_cselect_b32 s30, 0, s30
    v_add_u32 v12, s30, v20
    v_add_u32 v8, s30, v16
    v_add_u32 v13, s30, v21
    v_add_u32 v9, s30, v17
    v_add_u32 v10, s30, v18
    v_add_u32 v11, s30, v19
""")
step(1, reads(0, 0))
if STAMP:
    e("    s_waitcnt lgkmcnt(0)")
    e("    s_mov_b32 m0, s31")
    e("    s_nop 3")
    e("    v_writelane_b32 v30, s40, m0")
    e("    s_add_u32 m0, s31, 32")
    e("    s_nop 3")
    e("    v_writelane_b32 v30, s42, m0")
e("""    s_add_u32 s31, s31, 1
    s_cmp_lt_u32 s31, 15
    s_cbranch_scc1 L_cons_loop
""")
for kk in range(3):
    e("    s_waitcnt lgkmcnt(0)")
    step(kk & 1, reads((kk + 1) & 1, kk + 1))
e("    s_waitcnt lgkmcnt(0)")
step(1, [])
if STAMP:
    e("    s_memtime s[40:41]")
    e("    s_waitcnt lgkmcnt(0)")
    e("    v_writelane_b32 v30, s40, 22")
e("""    ; epilogue: region = 49152 + wave*16384
    s_lshl_b32 s28, s16, 14
    s_add_u32 s28, s28, 49152
    v_and_b32 v5, 7, v0                     ; l&7
    v_lshl_add_u32 v6, v3, 7, s28           ; region + (l&31)*128
    v_lshlrev_b32 v7, 1, v2                 ; 2h
""")
for j in range(2):
    for ee in range(2):
        e(f"    v_or_b32 v21, {4*j+ee}, v7")
        e(f"    v_xor_b32 v21, v21, v5")
        e(f"    v_lshl_add_u32 v{24+j*2+ee}, v21, 4, v6")
e("""    v_lshrrev_b32 v21, 3, v0
    v_and_b32 v22, 7, v21
    v_xor_b32 v22, v22, v5
    v_lshl_add_u32 v28, v21, 7, s28
    v_lshl_add_u32 v28, v22, 4, v28
    v_lshlrev_b32 v29, 11, v21
    v_lshl_add_u32 v29, v5, 4, v29
    s_lshl_b32 s32, s14, 19
    s_lshl_b32 s33, s17, 18
    s_add_u32 s32, s32, s33
    s_add_u32 s32, s32, s19
    s_nop 7
    s_nop 7
""")
for i4 in range(4):
    for j in range(2):
        b = ACC + (i4 * 2 + j) * 16
        tb = 32 + ((i4 * 2 + j) & 3) * 8
        for q in range(8):
            e(f"    v_cvt_pk_bf16_f32 v{tb+q}, v{b+2*q}, v{b+2*q+1}")
        e(f"    ds_write_b128 v{24+j*2}, {r4(tb)} offset:{i4*4096}")
        e(f"    ds_write_b128 v{24+j*2+1}, {r4(tb+4)} offset:{i4*4096}")
e("    s_waitcnt lgkmcnt(0)")
for q in range(16):
    e(f"    ds_read_b128 {r4(64+4*q)}, v28 offset:{q*1024}")
for q in range(16):
    e(f"    s_waitcnt lgkmcnt({15-q})")
    e(f"    buffer_store_dwordx4 {r4(64+4*q)}, v29, s[24:27], s32 offen")
    if q < 15:
        e(f"    s_add_u32 s32, s32, 16384")
if STAMP:
    e("""    s_waitcnt vmcnt(0)
    s_memtime s[40:41]
    s_memrealtime s[46:47]
    s_waitcnt lgkmcnt(0)
    v_writelane_b32 v30, s40, 23
    v_writelane_b32 v30, s46, 25
    s_cmp_lg_u32 s16, 0
    s_cbranch_scc1 L_nostamp
    s_mov_b32 s20, s12
    s_and_b32 s21, s13, 0xffff
    s_mov_b32 s22, 0x1000000
    s_mov_b32 s23, 0x00020000
    s_lshl_b32 s28, s2, 8
    s_add_u32 s28, s28, 0x400000
    v_lshlrev_b32 v31, 2, v0
    buffer_store_dword v30, v31, s[20:23], s28 offen
L_nostamp:""")
e("    s_endpgm")

e("""L_producer:
    s_sub_u32 s16, s16, 4                   ; p
    s_mov_b32 s19, 0x000f000f
    v_lshrrev_b32 v2, 3, v0
    v_lshlrev_b32 v2, 11, v2
    v_and_b32 v3, 7, v0
    v_lshrrev_b32 v4, 4, v0                 ; L>>4 (0..3)
    v_xor_b32 v5, v3, v4
    v_lshl_add_u32 v8, v5, 4, v2            ; even
    v_or_b32 v6, 4, v4
    v_xor_b32 v5, v3, v6
    v_lshl_add_u32 v9, v5, 4, v2            ; odd
    s_lshl_b32 s28, s16, 2
    v_add_u32 v5, s28, v4                   ; g
    v_and_b32 v6, 15, v0                    ; c
    v_lshlrev_b32 v10, 13, v5
    v_lshl_add_u32 v10, v6, 4, v10
    v_add_u32 v11, 0x1000, v10
    v_lshrrev_b32 v7, 2, v6                 ; c>>2
    v_and_b32 v12, 3, v6
    v_lshlrev_b32 v12, 4, v12
    v_lshl_add_u32 v12, v5, 10, v12         ; g*1024 + (c&3)*16
    v_add_u32 v12, 0x8000, v12
""")
for r in range(4):
    e(f"    v_xor_b32 v13, {r}, v7")
    e(f"    v_lshl_add_u32 v{16+r}, v13, 6, v12")
    if r:
        e(f"    v_add_u32 v{16+r}, {r*256}, v{16+r}")
e("""    ; s32 = global x offset: (m_tile*256 + p*64)*2048 ; advancing 128 per stage
    s_lshl_b32 s32, s14, 19
    s_lshl_b32 s33, s16, 17
    s_add_u32 s32, s32, s33
    s_lshl_b32 s33, s15, 8
    s_lshl_b32 s35, s16, 13
    s_mov_b32 s30, 0
    s_mov_b32 s34, 0
""")
RS = [64, 80]
TMP = 96
def issueX():
    e("    s_add_u32 m0, s30, s35")
    e("    s_mov_b32 s37, s32")
    for i in range(8):
        e(f"    buffer_load_dwordx4 v{8+(i&1)}, s[48:51], s37 offen lds")
        if i < 7:
            e("    s_add_u32 m0, m0, 0x400")
            e("    s_add_u32 s37, s37, 0x4000")
    e("    s_add_u32 s32, s32, 128")
    e("    s_add_u32 s30, s30, 49152")
    e("    s_cmp_eq_u32 s30, 147456")
    e("    s_cselect_b32 s30, 0, s30")
def issueR(st):
    b = RS[st]
    e(f"    buffer_load_dwordx4 {r4(b)}, v10, s[52:55], s33 offen")
    e(f"    buffer_load_dwordx4 {r4(b+4)}, v10, s[52:55], s33 offen offset:2048")
    e(f"    buffer_load_dwordx4 {r4(b+8)}, v11, s[52:55], s33 offen")
    e(f"    buffer_load_dwordx4 {r4(b+12)}, v11, s[52:55], s33 offen offset:2048")
    e("    s_add_u32 s33, s33, 0x20000")
def pruneW(st):
    b = RS[st]
    R = lambda r, d: b + 4 * r + d
    M = lambda r, d: TMP + 4 * r + d
    H1 = lambda d: TMP + 16 + d
    L1 = lambda d: TMP + 20 + d
    H2 = lambda d: TMP + 24 + d
    L2 = lambda d: TMP + 28 + d
    for r in range(4):
        e(f"    v_add_u32 v{20+r}, s34, v{16+r}")
    for r in range(4):
        for d in range(4):
            e(f"    v_and_b32 v{M(r,d)}, 0x7fff7fff, v{R(r,d)}")
    for d in range(4):
        e(f"    v_pk_max_u16 v{H1(d)}, v{M(0,d)}, v{M(1,d)}")
    for d in range(4):
        e(f"    v_pk_min_u16 v{L1(d)}, v{M(0,d)}, v{M(1,d)}")
    for d in range(4):
        e(f"    v_pk_max_u16 v{H2(d)}, v{M(2,d)}, v{M(3,d)}")
    for d in range(4):
        e(f"    v_pk_min_u16 v{L2(d)}, v{M(2,d)}, v{M(3,d)}")
    for d in range(4):
        e(f"    v_pk_min_u16 v{H1(d)}, v{H1(d)}, v{H2(d)}")
    for d in range(4):
        e(f"    v_pk_max_u16 v{L1(d)}, v{L1(d)}, v{L2(d)}")
    for d in range(4):
        e(f"    v_pk_max_u16 v{H1(d)}, v{H1(d)}, v{L1(d)}")
    for r in range(4):
        for d in range(4):
            e(f"    v_pk_sub_i16 v{M(r,d)}, v{M(r,d)}, v{H1(d)}")
        for d in range(4):
            e(f"    v_pk_ashrrev_i16 v{M(r,d)}, s19, v{M(r,d)}")
        for d in range(4):
            e(f"    v_bfi_b32 v{M(r,d)}, v{M(r,d)}, 0, v{R(r,d)}")
        e(f"    ds_write_b128 v{20+r}, {r4(M(r,0))}")
    e("    s_add_u32 s34, s34, 49152")
    e("    s_cmp_eq_u32 s34, 147456")
    e("    s_cselect_b32 s34, 0, s34")

issueR(0); issueR(1); issueX(); issueX()
e("    s_waitcnt vmcnt(20)")
pruneW(0); issueR(0)
e("    s_waitcnt vmcnt(20)")
pruneW(1); issueR(1)
e("    s_waitcnt vmcnt(16) lgkmcnt(0)")
e("    s_barrier                               ; B_-1")
issueX()
e("    s_waitcnt vmcnt(12)")
pruneW(0); issueR(0)
e("    s_waitcnt lgkmcnt(0)")
e("    s_barrier                               ; B_0")
e("    s_mov_b32 s31, 0")
e("L_prod_loop:")
for half in (1, 0):
    issueX()
    e("    s_waitcnt vmcnt(20)")
    pruneW(half); issueR(half)
    e("    s_waitcnt vmcnt(16) lgkmcnt(0)")
    e("    s_barrier")
e("""    s_add_u32 s31, s31, 1
    s_cmp_lt_u32 s31, 5
    s_cbranch_scc1 L_prod_loop
""")
issueX()
e("    s_waitcnt vmcnt(20)")
pruneW(1); issueR(1)
e("    s_waitcnt vmcnt(16) lgkmcnt(0)")
e("    s_barrier                               ; B_11")
issueX()
e("    s_waitcnt vmcnt(20)")
pruneW(0)
e("    s_waitcnt vmcnt(12) lgkmcnt(0)")
e("    s_barrier                               ; B_12")
issueX()
e("    s_waitcnt vmcnt(16)")
pruneW(1)
e("    s_waitcnt vmcnt(8) lgkmcnt(0)")
e("    s_barrier                               ; B_13")
e("    s_waitcnt vmcnt(0)")
e("    s_barrier                               ; B_14")
e("L_done:")
e("    s_endpgm")

e(f""".section .rodata,"a"
.p2align 6
.amdhsa_kernel {KNAME}
  .amdhsa_next_free_vgpr 256
  .amdhsa_next_free_sgpr 64
  .amdhsa_accum_offset 256
  .amdhsa_group_segment_fixed_size 0
  .amdhsa_kernarg_size 48
  .amdhsa_user_sgpr_count 2
  .amdhsa_user_sgpr_kernarg_segment_ptr 1
  .amdhsa_system_sgpr_workgroup_id_x 1
.end_amdhsa_kernel
""")

open(OUT, "w").write("\n".join(L))
print("wrote", OUT)
```

```python
import sys

STAMP = "--stamp" in sys.argv
NOPF = "--nopf" in sys.argv
DBG = "--dbg" in sys.argv
args = [a for a in sys.argv[1:] if not a.startswith("--")]
OUT = args[0] if args else "standalone__structured_sparse_n_m__ragged.s"
KNAME = "standalone__structured_sparse_n_m__ragged_kernel"

L = []
def e(s=""):
    L.append(s)

e(f"""; Kernarg layout for this problem (48 bytes, ptrs only, base s[0:1]):
; @launch grid=(256,1,1) block=(512,1,1) lds=147456
.amdgcn_target "amdgcn-amd-amdhsa--gfx950"
.text
.globl {KNAME}
.p2align 8
.type {KNAME},@function
{KNAME}:""")

ACC = 128
def acc(i4, j):
    b = ACC + (i4 * 2 + j) * 16
    return f"v[{b}:{b+15}]"
def frag_regs(s):
    base = 64 + 24 * s
    W = [base, base + 4]
    X = [base + 8 + 4 * i for i in range(4)]
    return W, X
def r4(b):
    return f"v[{b}:{b+3}]"
def r2(b):
    return f"v[{b}:{b+1}]"

NOLOC = "--noloc" in sys.argv
e("""    s_cmp_ge_u32 s2, 256
    s_cbranch_scc1 L_done
    s_load_dwordx4 s[4:7], s[0:1], 0        ; x, w
    s_load_dwordx4 s[8:11], s[0:1], 16      ; b, out
    s_load_dwordx2 s[12:13], s[0:1], 40     ; ws
    v_lshrrev_b32 v1, 6, v0
    v_and_b32 v0, 63, v0                    ; lane
    s_and_b32 s14, s2, 7                    ; xcd
    s_lshr_b32 s15, s2, 3                   ; idx
    s_lshr_b32 s16, s15, 3
    s_lshl_b32 s14, s14, 2
    s_add_u32 s14, s14, s16                 ; m_tile
    s_and_b32 s15, s15, 7                   ; n_tile
    v_readfirstlane_b32 s16, v1
""")
if NOLOC:
    e("    s_lshr_b32 s14, s2, 3")
    e("    s_and_b32 s15, s2, 7")
e("""    s_waitcnt lgkmcnt(0)
    s_mov_b32 s48, s4
    s_and_b32 s49, s5, 0xffff
    s_mov_b32 s50, 0x1000000
    s_mov_b32 s51, 0x00020000
    s_mov_b32 s52, s6
    s_and_b32 s53, s7, 0xffff
    s_mov_b32 s54, 0x200000
    s_mov_b32 s55, 0x00020000
    s_cmp_ge_u32 s16, 4
    s_cbranch_scc1 L_producer
""")

if DBG:
    e("    s_memrealtime s[56:57]")
if STAMP:
    e("    s_memtime s[40:41]")
    e("    s_memrealtime s[46:47]")
    e("    v_mov_b32 v30, 0")
e("""    s_setprio 3
    s_lshr_b32 s17, s16, 1                  ; wm
    s_and_b32 s18, s16, 1                   ; wn
    v_lshrrev_b32 v2, 5, v0                 ; h
    v_and_b32 v3, 31, v0                    ; l&31
""")
e("""    ; bias SRD s[20:23]
    s_mov_b32 s20, s8
    s_and_b32 s21, s9, 0xffff
    s_movk_i32 s22, 0x800
    s_mov_b32 s23, 0x00020000
    s_mov_b32 s24, s10
    s_and_b32 s25, s11, 0xffff
    s_mov_b32 s26, 0x1000000
    s_mov_b32 s27, 0x00020000
    s_lshl_b32 s19, s15, 8
    s_lshl_b32 s28, s18, 7
    s_add_u32 s19, s19, s28                 ; (n_tile*128+wn*64)*2
    v_lshl_add_u32 v4, v2, 5, s19
    buffer_load_dwordx4 v[32:35], v4, s[20:23], 0 offen
    buffer_load_dwordx4 v[36:39], v4, s[20:23], 0 offen offset:16
    buffer_load_dwordx4 v[40:43], v4, s[20:23], 0 offen offset:64
    buffer_load_dwordx4 v[44:47], v4, s[20:23], 0 offen offset:80
""")
if not NOPF:
    e("""    ; L2 prefetch of x: rows m_tile*256 + n_tile*32 + (l&31), line = (q*4+wave)*2 + h
    s_lshl_b32 s28, s14, 19
    s_lshl_b32 s29, s15, 16
    s_add_u32 s28, s28, s29
    s_lshl_b32 s29, s16, 8
    s_add_u32 s28, s28, s29
    v_lshlrev_b32 v4, 11, v3
    v_lshl_add_u32 v4, v2, 7, v4
    buffer_load_dword v31, v4, s[48:51], s28 offen
    buffer_load_dword v31, v4, s[48:51], s28 offen offset:1024
    s_and_b32 s28, s14, 3
    s_lshl_b32 s28, s28, 11
    s_lshl_b32 s29, s15, 8
    s_add_u32 s28, s28, s29
    s_lshl_b32 s29, s16, 18
    s_add_u32 s28, s28, s29
    s_add_u32 s29, s28, 0x100000
    v_lshlrev_b32 v4, 13, v3
    v_lshl_add_u32 v4, v2, 7, v4
    buffer_load_dword v31, v4, s[52:55], s28 offen
    buffer_load_dword v31, v4, s[52:55], s29 offen
""")
e("""    ; x frag base addresses: wm*16384 + (l&31)*128 + ((2kk+h) ^ ((l>>1)&7))*16
    v_bfe_u32 v5, v0, 1, 3                  ; (l>>1)&7
    s_lshl_b32 s28, s17, 14
    v_lshl_add_u32 v6, v3, 7, s28           ; wm*16384 + (l&31)*128
""")
for kk in range(4):
    e(f"    v_or_b32 v7, {2*kk}, v2")
    e(f"    v_xor_b32 v7, v7, v5")
    e(f"    v_lshl_add_u32 v{16+kk}, v7, 4, v6")
e("""    ; W tr-read base: 32768 + (8h + r)*256 + ((2wn+j)^r)*64 + nq*8 ; r=(l&15)>>2, qi=4*((l>>4)&1)+(l&3), nq=4*(qi&1)+(qi>>1)
    v_bfe_u32 v5, v0, 2, 2                  ; r
    v_lshl_add_u32 v6, v2, 3, v5            ; 8h + r
    v_lshlrev_b32 v6, 8, v6
    v_add_u32 v6, 0x8000, v6
    v_and_b32 v7, 1, v0                     ; qi&1
    v_lshlrev_b32 v7, 2, v7                 ; 4*(qi&1)
    v_bfe_u32 v21, v0, 1, 1                 ; (l>>1)&1
    v_bfe_u32 v22, v0, 4, 1                 ; gi
    v_lshl_add_u32 v21, v22, 1, v21
    v_add_u32 v7, v7, v21                   ; nq
    v_lshl_add_u32 v6, v7, 3, v6
    s_lshl_b32 s28, s18, 1                  ; 2wn
    v_xor_b32 v7, s28, v5
    v_lshl_add_u32 v20, v7, 6, v6           ; j=0
    s_add_u32 s28, s28, 1
    v_xor_b32 v7, s28, v5
    v_lshl_add_u32 v21, v7, 6, v6           ; j=1
    v_mov_b32 v8, v16
    v_mov_b32 v9, v17
    v_mov_b32 v10, v18
    v_mov_b32 v11, v19
    v_mov_b32 v12, v20
    v_mov_b32 v13, v21
    s_mov_b32 s30, 0
    s_mov_b32 s31, 0
""")
e("    s_waitcnt vmcnt(%d)" % (0 if NOPF else 4))
for j in range(2):
    for r in range(16):
        src = 32 + j * 8 + (r >> 1)
        for i4 in range(4):
            d = ACC + (i4 * 2 + j) * 16 + r
            if r & 1:
                e(f"    v_and_b32 v{d}, 0xffff0000, v{src}")
            else:
                e(f"    v_lshlrev_b32 v{d}, 16, v{src}")

def reads(s, kk):
    W, X = frag_regs(s)
    out = []
    out.append(f"    ds_read_b64_tr_b16 {r2(W[0])}, v12 offset:{kk*4096}")
    out.append(f"    ds_read_b64_tr_b16 {r2(W[0]+2)}, v12 offset:{kk*4096+1024}")
    out.append(f"    ds_read_b128 {r4(X[0])}, v{8+kk}")
    out.append(f"    ds_read_b64_tr_b16 {r2(W[1])}, v13 offset:{kk*4096}")
    out.append(f"    ds_read_b64_tr_b16 {r2(W[1]+2)}, v13 offset:{kk*4096+1024}")
    out.append(f"    ds_read_b128 {r4(X[1])}, v{8+kk} offset:4096")
    out.append(f"    ds_read_b128 {r4(X[2])}, v{8+kk} offset:8192")
    out.append(f"    ds_read_b128 {r4(X[3])}, v{8+kk} offset:12288")
    return out

def step(s, rd):
    W, X = frag_regs(s)
    order = [(0, 0), (0, 1), (1, 0), (1, 1), (2, 0), (2, 1), (3, 0), (3, 1)]
    rd = list(rd)
    per = [3, 3, 2, 0, 0, 0, 0, 0]
    for n, (i4, j) in enumerate(order):
        e(f"    v_mfma_f32_32x32x16_bf16 {acc(i4,j)}, {r4(W[j])}, {r4(X[i4])}, {acc(i4,j)}")
        for _ in range(per[n]):
            if rd:
                e(rd.pop(0))

if STAMP:
    e("    s_waitcnt lgkmcnt(0)")
    e("    v_writelane_b32 v30, s40, 20")
    e("    v_writelane_b32 v30, s46, 24")
e("    s_barrier")
if DBG:
    e("    s_memrealtime s[58:59]")
if STAMP:
    e("    s_memtime s[40:41]")
    e("    s_waitcnt lgkmcnt(0)")
    e("    v_writelane_b32 v30, s40, 21")
for x in reads(0, 0):
    e(x)
e("L_cons_loop:")
for kk in range(3):
    e("    s_waitcnt lgkmcnt(0)")
    step(kk & 1, reads((kk + 1) & 1, kk + 1))
e("    s_waitcnt lgkmcnt(0)")
e("    s_barrier")
if STAMP:
    e("    s_memtime s[40:41]")
    e("    s_memrealtime s[42:43]")
e("""    s_add_u32 s30, s30, 49152
    s_cmp_eq_u32 s30, 147456
    s_cselect_b32 s30, 0, s30
    v_add_u32 v12, s30, v20
    v_add_u32 v8, s30, v16
    v_add_u32 v13, s30, v21
    v_add_u32 v9, s30, v17
    v_add_u32 v10, s30, v18
    v_add_u32 v11, s30, v19
""")
step(1, reads(0, 0))
if STAMP:
    e("    s_waitcnt lgkmcnt(0)")
    e("    s_mov_b32 m0, s31")
    e("    s_nop 3")
    e("    v_writelane_b32 v30, s40, m0")
    e("    s_add_u32 m0, s31, 32")
    e("    s_nop 3")
    e("    v_writelane_b32 v30, s42, m0")
e("""    s_add_u32 s31, s31, 1
    s_cmp_lt_u32 s31, 15
    s_cbranch_scc1 L_cons_loop
""")
for kk in range(3):
    e("    s_waitcnt lgkmcnt(0)")
    step(kk & 1, reads((kk + 1) & 1, kk + 1))
e("    s_waitcnt lgkmcnt(0)")
step(1, [])
if DBG:
    e("    s_memrealtime s[60:61]")
if STAMP:
    e("    s_memtime s[40:41]")
    e("    s_waitcnt lgkmcnt(0)")
    e("    v_writelane_b32 v30, s40, 22")
e("""    ; epilogue: region = 49152 + wave*16384
    s_lshl_b32 s28, s16, 14
    s_add_u32 s28, s28, 49152
    v_and_b32 v5, 7, v0                     ; l&7
    v_lshl_add_u32 v6, v3, 7, s28           ; region + (l&31)*128
    v_lshlrev_b32 v7, 1, v2                 ; 2h
""")
for j in range(2):
    for ee in range(2):
        e(f"    v_or_b32 v21, {4*j+ee}, v7")
        e(f"    v_xor_b32 v21, v21, v5")
        e(f"    v_lshl_add_u32 v{24+j*2+ee}, v21, 4, v6")
e("""    v_lshrrev_b32 v21, 3, v0
    v_and_b32 v22, 7, v21
    v_xor_b32 v22, v22, v5
    v_lshl_add_u32 v28, v21, 7, s28
    v_lshl_add_u32 v28, v22, 4, v28
    v_lshlrev_b32 v29, 11, v21
    v_lshl_add_u32 v29, v5, 4, v29
    s_lshl_b32 s32, s14, 19
    s_lshl_b32 s33, s17, 18
    s_add_u32 s32, s32, s33
    s_add_u32 s32, s32, s19
    s_nop 7
    s_nop 7
""")
for i4 in range(4):
    for j in range(2):
        b = ACC + (i4 * 2 + j) * 16
        tb = 32 + ((i4 * 2 + j) & 3) * 8
        for q in range(8):
            e(f"    v_cvt_pk_bf16_f32 v{tb+q}, v{b+2*q}, v{b+2*q+1}")
        e(f"    ds_write_b128 v{24+j*2}, {r4(tb)} offset:{i4*4096}")
        e(f"    ds_write_b128 v{24+j*2+1}, {r4(tb+4)} offset:{i4*4096}")
e("    s_waitcnt lgkmcnt(0)")
for q in range(16):
    e(f"    ds_read_b128 {r4(64+4*q)}, v28 offset:{q*1024}")
for q in range(16):
    e(f"    s_waitcnt lgkmcnt({15-q})")
    e(f"    buffer_store_dwordx4 {r4(64+4*q)}, v29, s[24:27], s32 offen")
    if q < 15:
        e(f"    s_add_u32 s32, s32, 16384")
if STAMP:
    e("""    s_waitcnt vmcnt(0)
    s_memtime s[40:41]
    s_memrealtime s[46:47]
    s_waitcnt lgkmcnt(0)
    v_writelane_b32 v30, s40, 23
    v_writelane_b32 v30, s46, 25
    s_cmp_lg_u32 s16, 0
    s_cbranch_scc1 L_nostamp
    s_mov_b32 s20, s12
    s_and_b32 s21, s13, 0xffff
    s_mov_b32 s22, 0x1000000
    s_mov_b32 s23, 0x00020000
    s_lshl_b32 s28, s2, 8
    s_add_u32 s28, s28, 0x400000
    v_lshlrev_b32 v31, 2, v0
    buffer_store_dword v30, v31, s[20:23], s28 offen
L_nostamp:""")
if DBG:
    e("""    s_waitcnt vmcnt(0)
    s_memrealtime s[62:63]
    s_load_dwordx2 s[36:37], s[0:1], 32
    s_waitcnt lgkmcnt(0)
    s_mov_b32 s20, s36
    s_and_b32 s21, s37, 0xffff
    s_movk_i32 s22, 0x100
    s_mov_b32 s23, 0x00020000
    s_not_b32 s38, s56
    v_mov_b32 v32, s38
    v_mov_b32 v33, s62
    v_mov_b32 v34, s58
    v_mov_b32 v35, s60
    s_not_b32 s38, s58
    v_mov_b32 v36, s38
    s_not_b32 s38, s60
    v_mov_b32 v37, s38
    v_mov_b32 v38, s56
    v_mov_b32 v31, 0
    s_mov_b64 exec, 1
    buffer_atomic_umax v32, v31, s[20:23], 0 offen
    buffer_atomic_umax v33, v31, s[20:23], 0 offen offset:4
    buffer_atomic_umax v34, v31, s[20:23], 0 offen offset:8
    buffer_atomic_umax v35, v31, s[20:23], 0 offen offset:12
    buffer_atomic_umax v36, v31, s[20:23], 0 offen offset:16
    buffer_atomic_umax v37, v31, s[20:23], 0 offen offset:20
    buffer_atomic_umax v38, v31, s[20:23], 0 offen offset:24
""")
e("    s_endpgm")

e("""L_producer:
    s_sub_u32 s16, s16, 4                   ; p
    s_mov_b32 s19, 0x000f000f
    v_lshrrev_b32 v2, 3, v0
    v_lshlrev_b32 v2, 11, v2
    v_and_b32 v3, 7, v0
    v_lshrrev_b32 v4, 4, v0                 ; L>>4 (0..3)
    v_xor_b32 v5, v3, v4
    v_lshl_add_u32 v8, v5, 4, v2            ; even
    v_or_b32 v6, 4, v4
    v_xor_b32 v5, v3, v6
    v_lshl_add_u32 v9, v5, 4, v2            ; odd
    s_lshl_b32 s28, s16, 2
    v_add_u32 v5, s28, v4                   ; g
    v_and_b32 v6, 15, v0                    ; c
    v_lshlrev_b32 v10, 13, v5
    v_lshl_add_u32 v10, v6, 4, v10
    v_add_u32 v11, 0x1000, v10
    v_lshrrev_b32 v7, 2, v6                 ; c>>2
    v_and_b32 v12, 3, v6
    v_lshlrev_b32 v12, 4, v12
    v_lshl_add_u32 v12, v5, 10, v12         ; g*1024 + (c&3)*16
    v_add_u32 v12, 0x8000, v12
""")
for r in range(4):
    e(f"    v_xor_b32 v13, {r}, v7")
    e(f"    v_lshl_add_u32 v{16+r}, v13, 6, v12")
    if r:
        e(f"    v_add_u32 v{16+r}, {r*256}, v{16+r}")
e("""    ; s32 = global x offset: (m_tile*256 + p*64)*2048 ; advancing 128 per stage
    s_lshl_b32 s32, s14, 19
    s_lshl_b32 s33, s16, 17
    s_add_u32 s32, s32, s33
    s_lshl_b32 s33, s15, 8
    s_lshl_b32 s35, s16, 13
    s_mov_b32 s30, 0
    s_mov_b32 s34, 0
""")
RS = [64, 80]
TMP = 96
def issueX():
    e("    s_add_u32 m0, s30, s35")
    e("    s_mov_b32 s37, s32")
    for i in range(8):
        e(f"    buffer_load_dwordx4 v{8+(i&1)}, s[48:51], s37 offen lds")
        if i < 7:
            e("    s_add_u32 m0, m0, 0x400")
            e("    s_add_u32 s37, s37, 0x4000")
    e("    s_add_u32 s32, s32, 128")
    e("    s_add_u32 s30, s30, 49152")
    e("    s_cmp_eq_u32 s30, 147456")
    e("    s_cselect_b32 s30, 0, s30")
def issueR(st):
    b = RS[st]
    e(f"    buffer_load_dwordx4 {r4(b)}, v10, s[52:55], s33 offen")
    e(f"    buffer_load_dwordx4 {r4(b+4)}, v10, s[52:55], s33 offen offset:2048")
    e(f"    buffer_load_dwordx4 {r4(b+8)}, v11, s[52:55], s33 offen")
    e(f"    buffer_load_dwordx4 {r4(b+12)}, v11, s[52:55], s33 offen offset:2048")
    e("    s_add_u32 s33, s33, 0x20000")
def pruneW(st):
    b = RS[st]
    R = lambda r, d: b + 4 * r + d
    M = lambda r, d: TMP + 4 * r + d
    H1 = lambda d: TMP + 16 + d
    L1 = lambda d: TMP + 20 + d
    H2 = lambda d: TMP + 24 + d
    L2 = lambda d: TMP + 28 + d
    for r in range(4):
        e(f"    v_add_u32 v{20+r}, s34, v{16+r}")
    for r in range(4):
        for d in range(4):
            e(f"    v_and_b32 v{M(r,d)}, 0x7fff7fff, v{R(r,d)}")
    for d in range(4):
        e(f"    v_pk_max_u16 v{H1(d)}, v{M(0,d)}, v{M(1,d)}")
    for d in range(4):
        e(f"    v_pk_min_u16 v{L1(d)}, v{M(0,d)}, v{M(1,d)}")
    for d in range(4):
        e(f"    v_pk_max_u16 v{H2(d)}, v{M(2,d)}, v{M(3,d)}")
    for d in range(4):
        e(f"    v_pk_min_u16 v{L2(d)}, v{M(2,d)}, v{M(3,d)}")
    for d in range(4):
        e(f"    v_pk_min_u16 v{H1(d)}, v{H1(d)}, v{H2(d)}")
    for d in range(4):
        e(f"    v_pk_max_u16 v{L1(d)}, v{L1(d)}, v{L2(d)}")
    for d in range(4):
        e(f"    v_pk_max_u16 v{H1(d)}, v{H1(d)}, v{L1(d)}")
    for r in range(4):
        for d in range(4):
            e(f"    v_pk_sub_i16 v{M(r,d)}, v{M(r,d)}, v{H1(d)}")
        for d in range(4):
            e(f"    v_pk_ashrrev_i16 v{M(r,d)}, s19, v{M(r,d)}")
        for d in range(4):
            e(f"    v_bfi_b32 v{M(r,d)}, v{M(r,d)}, 0, v{R(r,d)}")
        e(f"    ds_write_b128 v{20+r}, {r4(M(r,0))}")
    e("    s_add_u32 s34, s34, 49152")
    e("    s_cmp_eq_u32 s34, 147456")
    e("    s_cselect_b32 s34, 0, s34")

issueR(0); issueR(1); issueX(); issueX()
e("    s_waitcnt vmcnt(20)")
pruneW(0); issueR(0)
e("    s_waitcnt vmcnt(20)")
pruneW(1); issueR(1)
e("    s_waitcnt vmcnt(16) lgkmcnt(0)")
e("    s_barrier                               ; B_-1")
issueX()
e("    s_waitcnt vmcnt(12)")
pruneW(0); issueR(0)
e("    s_waitcnt lgkmcnt(0)")
e("    s_barrier                               ; B_0")
e("    s_mov_b32 s31, 0")
e("L_prod_loop:")
for half in (1, 0):
    issueX()
    e("    s_waitcnt vmcnt(20)")
    pruneW(half); issueR(half)
    e("    s_waitcnt vmcnt(16) lgkmcnt(0)")
    e("    s_barrier")
e("""    s_add_u32 s31, s31, 1
    s_cmp_lt_u32 s31, 5
    s_cbranch_scc1 L_prod_loop
""")
issueX()
e("    s_waitcnt vmcnt(20)")
pruneW(1); issueR(1)
e("    s_waitcnt vmcnt(16) lgkmcnt(0)")
e("    s_barrier                               ; B_11")
issueX()
e("    s_waitcnt vmcnt(20)")
pruneW(0)
e("    s_waitcnt vmcnt(12) lgkmcnt(0)")
e("    s_barrier                               ; B_12")
issueX()
e("    s_waitcnt vmcnt(16)")
pruneW(1)
e("    s_waitcnt vmcnt(8) lgkmcnt(0)")
e("    s_barrier                               ; B_13")
e("    s_waitcnt vmcnt(0)")
e("    s_barrier                               ; B_14")
e("L_done:")
e("    s_endpgm")

e(f""".section .rodata,"a"
.p2align 6
.amdhsa_kernel {KNAME}
  .amdhsa_next_free_vgpr 256
  .amdhsa_next_free_sgpr 64
  .amdhsa_accum_offset 256
  .amdhsa_group_segment_fixed_size 0
  .amdhsa_kernarg_size 48
  .amdhsa_user_sgpr_count 2
  .amdhsa_user_sgpr_kernarg_segment_ptr 1
  .amdhsa_system_sgpr_workgroup_id_x 1
.end_amdhsa_kernel
""")

open(OUT, "w").write("\n".join(L))
print("wrote", OUT)
```

```python
import sys

STAMP = "--stamp" in sys.argv
NOPF = "--nopf" in sys.argv
DBG = "--dbg" in sys.argv
NOPRUNE = "--noprune" in sys.argv
PSTAMP = "--pstamp" in sys.argv
NOPRIO = "--noprio" in sys.argv
args = [a for a in sys.argv[1:] if not a.startswith("--")]
OUT = args[0] if args else "standalone__structured_sparse_n_m__ragged.s"
KNAME = "standalone__structured_sparse_n_m__ragged_kernel"

L = []
def e(s=""):
    L.append(s)

e(f"""; Kernarg layout for this problem (48 bytes, ptrs only, base s[0:1]):
; @launch grid=(256,1,1) block=(512,1,1) lds=147456
.amdgcn_target "amdgcn-amd-amdhsa--gfx950"
.text
.globl {KNAME}
.p2align 8
.type {KNAME},@function
{KNAME}:""")

ACC = 128
def acc(i4, j):
    b = ACC + (i4 * 2 + j) * 16
    return f"v[{b}:{b+15}]"
def frag_regs(s):
    base = 64 + 24 * s
    W = [base, base + 4]
    X = [base + 8 + 4 * i for i in range(4)]
    return W, X
def r4(b):
    return f"v[{b}:{b+3}]"
def r2(b):
    return f"v[{b}:{b+1}]"

NOLOC = "--noloc" in sys.argv
e("""    s_cmp_ge_u32 s2, 256
    s_cbranch_scc1 L_done
    s_load_dwordx4 s[4:7], s[0:1], 0        ; x, w
    s_load_dwordx4 s[8:11], s[0:1], 16      ; b, out
    s_load_dwordx2 s[12:13], s[0:1], 40     ; ws
    v_lshrrev_b32 v1, 6, v0
    v_and_b32 v0, 63, v0                    ; lane
    s_and_b32 s14, s2, 7                    ; xcd
    s_lshr_b32 s15, s2, 3                   ; idx
    s_lshr_b32 s16, s15, 3
    s_lshl_b32 s14, s14, 2
    s_add_u32 s14, s14, s16                 ; m_tile
    s_and_b32 s15, s15, 7                   ; n_tile
    v_readfirstlane_b32 s16, v1
""")
if NOLOC:
    e("    s_lshr_b32 s14, s2, 3")
    e("    s_and_b32 s15, s2, 7")
e("""    s_waitcnt lgkmcnt(0)
    s_mov_b32 s48, s4
    s_and_b32 s49, s5, 0xffff
    s_mov_b32 s50, 0x1000000
    s_mov_b32 s51, 0x00020000
    s_mov_b32 s52, s6
    s_and_b32 s53, s7, 0xffff
    s_mov_b32 s54, 0x200000
    s_mov_b32 s55, 0x00020000
    s_cmp_ge_u32 s16, 4
    s_cbranch_scc1 L_producer
""")

if DBG:
    e("    s_memrealtime s[56:57]")
if STAMP:
    e("    s_memtime s[40:41]")
    e("    s_memrealtime s[46:47]")
    e("    v_mov_b32 v30, 0")
if not NOPRIO:
    e("    s_setprio 3")
e("""    s_lshr_b32 s17, s16, 1                  ; wm
    s_and_b32 s18, s16, 1                   ; wn
    v_lshrrev_b32 v2, 5, v0                 ; h
    v_and_b32 v3, 31, v0                    ; l&31
""")
e("""    ; bias SRD s[20:23]
    s_mov_b32 s20, s8
    s_and_b32 s21, s9, 0xffff
    s_movk_i32 s22, 0x800
    s_mov_b32 s23, 0x00020000
    s_mov_b32 s24, s10
    s_and_b32 s25, s11, 0xffff
    s_mov_b32 s26, 0x1000000
    s_mov_b32 s27, 0x00020000
    s_lshl_b32 s19, s15, 8
    s_lshl_b32 s28, s18, 7
    s_add_u32 s19, s19, s28                 ; (n_tile*128+wn*64)*2
    v_lshl_add_u32 v4, v2, 5, s19
    buffer_load_dwordx4 v[32:35], v4, s[20:23], 0 offen
    buffer_load_dwordx4 v[36:39], v4, s[20:23], 0 offen offset:16
    buffer_load_dwordx4 v[40:43], v4, s[20:23], 0 offen offset:64
    buffer_load_dwordx4 v[44:47], v4, s[20:23], 0 offen offset:80
""")
if not NOPF:
    e("""    ; L2 prefetch of x: rows m_tile*256 + n_tile*32 + (l&31), line = (q*4+wave)*2 + h
    s_lshl_b32 s28, s14, 19
    s_lshl_b32 s29, s15, 16
    s_add_u32 s28, s28, s29
    s_lshl_b32 s29, s16, 8
    s_add_u32 s28, s28, s29
    v_lshlrev_b32 v4, 11, v3
    v_lshl_add_u32 v4, v2, 7, v4
    buffer_load_dword v31, v4, s[48:51], s28 offen
    buffer_load_dword v31, v4, s[48:51], s28 offen offset:1024
    s_and_b32 s28, s14, 3
    s_lshl_b32 s28, s28, 11
    s_lshl_b32 s29, s15, 8
    s_add_u32 s28, s28, s29
    s_lshl_b32 s29, s16, 18
    s_add_u32 s28, s28, s29
    s_add_u32 s29, s28, 0x100000
    v_lshlrev_b32 v4, 13, v3
    v_lshl_add_u32 v4, v2, 7, v4
    buffer_load_dword v31, v4, s[52:55], s28 offen
    buffer_load_dword v31, v4, s[52:55], s29 offen
""")
e("""    ; x frag base addresses: wm*16384 + (l&31)*128 + ((2kk+h) ^ ((l>>1)&7))*16
    v_bfe_u32 v5, v0, 1, 3                  ; (l>>1)&7
    s_lshl_b32 s28, s17, 14
    v_lshl_add_u32 v6, v3, 7, s28           ; wm*16384 + (l&31)*128
""")
for kk in range(4):
    e(f"    v_or_b32 v7, {2*kk}, v2")
    e(f"    v_xor_b32 v7, v7, v5")
    e(f"    v_lshl_add_u32 v{16+kk}, v7, 4, v6")
e("""    ; W tr-read base: 32768 + (8h + r)*256 + ((2wn+j)^r)*64 + nq*8 ; r=(l&15)>>2, qi=4*((l>>4)&1)+(l&3), nq=4*(qi&1)+(qi>>1)
    v_bfe_u32 v5, v0, 2, 2                  ; r
    v_lshl_add_u32 v6, v2, 3, v5            ; 8h + r
    v_lshlrev_b32 v6, 8, v6
    v_add_u32 v6, 0x8000, v6
    v_and_b32 v7, 1, v0                     ; qi&1
    v_lshlrev_b32 v7, 2, v7                 ; 4*(qi&1)
    v_bfe_u32 v21, v0, 1, 1                 ; (l>>1)&1
    v_bfe_u32 v22, v0, 4, 1                 ; gi
    v_lshl_add_u32 v21, v22, 1, v21
    v_add_u32 v7, v7, v21                   ; nq
    v_lshl_add_u32 v6, v7, 3, v6
    s_lshl_b32 s28, s18, 1                  ; 2wn
    v_xor_b32 v7, s28, v5
    v_lshl_add_u32 v20, v7, 6, v6           ; j=0
    s_add_u32 s28, s28, 1
    v_xor_b32 v7, s28, v5
    v_lshl_add_u32 v21, v7, 6, v6           ; j=1
    v_mov_b32 v8, v16
    v_mov_b32 v9, v17
    v_mov_b32 v10, v18
    v_mov_b32 v11, v19
    v_mov_b32 v12, v20
    v_mov_b32 v13, v21
    s_mov_b32 s30, 0
    s_mov_b32 s31, 0
""")
e("    s_waitcnt vmcnt(%d)" % (0 if NOPF else 4))
for j in range(2):
    for r in range(16):
        src = 32 + j * 8 + (r >> 1)
        for i4 in range(4):
            d = ACC + (i4 * 2 + j) * 16 + r
            if r & 1:
                e(f"    v_and_b32 v{d}, 0xffff0000, v{src}")
            else:
                e(f"    v_lshlrev_b32 v{d}, 16, v{src}")

def reads(s, kk):
    W, X = frag_regs(s)
    out = []
    out.append(f"    ds_read_b64_tr_b16 {r2(W[0])}, v12 offset:{kk*4096}")
    out.append(f"    ds_read_b64_tr_b16 {r2(W[0]+2)}, v12 offset:{kk*4096+1024}")
    out.append(f"    ds_read_b128 {r4(X[0])}, v{8+kk}")
    out.append(f"    ds_read_b64_tr_b16 {r2(W[1])}, v13 offset:{kk*4096}")
    out.append(f"    ds_read_b64_tr_b16 {r2(W[1]+2)}, v13 offset:{kk*4096+1024}")
    out.append(f"    ds_read_b128 {r4(X[1])}, v{8+kk} offset:4096")
    out.append(f"    ds_read_b128 {r4(X[2])}, v{8+kk} offset:8192")
    out.append(f"    ds_read_b128 {r4(X[3])}, v{8+kk} offset:12288")
    return out

def step(s, rd):
    W, X = frag_regs(s)
    order = [(0, 0), (0, 1), (1, 0), (1, 1), (2, 0), (2, 1), (3, 0), (3, 1)]
    rd = list(rd)
    per = [3, 3, 2, 0, 0, 0, 0, 0]
    for n, (i4, j) in enumerate(order):
        e(f"    v_mfma_f32_32x32x16_bf16 {acc(i4,j)}, {r4(W[j])}, {r4(X[i4])}, {acc(i4,j)}")
        for _ in range(per[n]):
            if rd:
                e(rd.pop(0))

if STAMP:
    e("    s_waitcnt lgkmcnt(0)")
    e("    v_writelane_b32 v30, s40, 20")
    e("    v_writelane_b32 v30, s46, 24")
e("    s_barrier")
if DBG:
    e("    s_memrealtime s[58:59]")
if STAMP:
    e("    s_memtime s[40:41]")
    e("    s_waitcnt lgkmcnt(0)")
    e("    v_writelane_b32 v30, s40, 21")
for x in reads(0, 0):
    e(x)
e("L_cons_loop:")
for kk in range(3):
    e("    s_waitcnt lgkmcnt(0)")
    step(kk & 1, reads((kk + 1) & 1, kk + 1))
e("    s_waitcnt lgkmcnt(0)")
e("    s_barrier")
if STAMP:
    e("    s_memtime s[40:41]")
    e("    s_memrealtime s[42:43]")
e("""    s_add_u32 s30, s30, 49152
    s_cmp_eq_u32 s30, 147456
    s_cselect_b32 s30, 0, s30
    v_add_u32 v12, s30, v20
    v_add_u32 v8, s30, v16
    v_add_u32 v13, s30, v21
    v_add_u32 v9, s30, v17
    v_add_u32 v10, s30, v18
    v_add_u32 v11, s30, v19
""")
step(1, reads(0, 0))
if STAMP:
    e("    s_waitcnt lgkmcnt(0)")
    e("    s_mov_b32 m0, s31")
    e("    s_nop 3")
    e("    v_writelane_b32 v30, s40, m0")
    e("    s_add_u32 m0, s31, 32")
    e("    s_nop 3")
    e("    v_writelane_b32 v30, s42, m0")
e("""    s_add_u32 s31, s31, 1
    s_cmp_lt_u32 s31, 15
    s_cbranch_scc1 L_cons_loop
""")
for kk in range(3):
    e("    s_waitcnt lgkmcnt(0)")
    step(kk & 1, reads((kk + 1) & 1, kk + 1))
e("    s_waitcnt lgkmcnt(0)")
step(1, [])
if DBG:
    e("    s_memrealtime s[60:61]")
if STAMP:
    e("    s_memtime s[40:41]")
    e("    s_waitcnt lgkmcnt(0)")
    e("    v_writelane_b32 v30, s40, 22")
e("""    ; epilogue: region = 49152 + wave*16384
    s_lshl_b32 s28, s16, 14
    s_add_u32 s28, s28, 49152
    v_and_b32 v5, 7, v0                     ; l&7
    v_lshl_add_u32 v6, v3, 7, s28           ; region + (l&31)*128
    v_lshlrev_b32 v7, 1, v2                 ; 2h
""")
for j in range(2):
    for ee in range(2):
        e(f"    v_or_b32 v21, {4*j+ee}, v7")
        e(f"    v_xor_b32 v21, v21, v5")
        e(f"    v_lshl_add_u32 v{24+j*2+ee}, v21, 4, v6")
e("""    v_lshrrev_b32 v21, 3, v0
    v_and_b32 v22, 7, v21
    v_xor_b32 v22, v22, v5
    v_lshl_add_u32 v28, v21, 7, s28
    v_lshl_add_u32 v28, v22, 4, v28
    v_lshlrev_b32 v29, 11, v21
    v_lshl_add_u32 v29, v5, 4, v29
    s_lshl_b32 s32, s14, 19
    s_lshl_b32 s33, s17, 18
    s_add_u32 s32, s32, s33
    s_add_u32 s32, s32, s19
    s_nop 7
    s_nop 7
""")
def ep_write(i4):
    for j in range(2):
        b = ACC + (i4 * 2 + j) * 16
        tb = 32 + ((i4 * 2 + j) & 3) * 8
        for q in range(8):
            e(f"    v_cvt_pk_bf16_f32 v{tb+q}, v{b+2*q}, v{b+2*q+1}")
        e(f"    ds_write_b128 v{24+j*2}, {r4(tb)} offset:{i4*4096}")
        e(f"    ds_write_b128 v{24+j*2+1}, {r4(tb+4)} offset:{i4*4096}")
def ep_read(i4):
    for q in range(4):
        e(f"    ds_read_b128 {r4(64+16*i4+4*q)}, v28 offset:{(i4*4+q)*1024}")
def ep_store(i4, pending):
    for q in range(4):
        e(f"    s_waitcnt lgkmcnt({pending + 3 - q})")
        e(f"    buffer_store_dwordx4 {r4(64+16*i4+4*q)}, v29, s[24:27], s32 offen")
        e(f"    s_add_u32 s32, s32, 16384")
ep_write(0); ep_read(0)
ep_write(1); ep_read(1); ep_store(0, 8)
ep_write(2); ep_read(2); ep_store(1, 8)
ep_write(3); ep_read(3); ep_store(2, 8)
ep_store(3, 0)
if STAMP:
    e("""    s_waitcnt vmcnt(0)
    s_memtime s[40:41]
    s_memrealtime s[46:47]
    s_waitcnt lgkmcnt(0)
    v_writelane_b32 v30, s40, 23
    v_writelane_b32 v30, s46, 25
    s_cmp_lg_u32 s16, 0
    s_cbranch_scc1 L_nostamp
    s_mov_b32 s20, s12
    s_and_b32 s21, s13, 0xffff
    s_mov_b32 s22, 0x1000000
    s_mov_b32 s23, 0x00020000
    s_lshl_b32 s28, s2, 8
    s_add_u32 s28, s28, 0x400000
    v_lshlrev_b32 v31, 2, v0
    buffer_store_dword v30, v31, s[20:23], s28 offen
L_nostamp:""")
if DBG:
    e("""    s_waitcnt vmcnt(0)
    s_memrealtime s[62:63]
    s_load_dwordx2 s[36:37], s[0:1], 32
    s_waitcnt lgkmcnt(0)
    s_mov_b32 s20, s36
    s_and_b32 s21, s37, 0xffff
    s_movk_i32 s22, 0x100
    s_mov_b32 s23, 0x00020000
    s_not_b32 s38, s56
    v_mov_b32 v32, s38
    v_mov_b32 v33, s62
    v_mov_b32 v34, s58
    v_mov_b32 v35, s60
    s_not_b32 s38, s58
    v_mov_b32 v36, s38
    s_not_b32 s38, s60
    v_mov_b32 v37, s38
    v_mov_b32 v38, s56
    v_mov_b32 v31, 0
    s_mov_b64 exec, 1
    buffer_atomic_umax v32, v31, s[20:23], 0 offen
    buffer_atomic_umax v33, v31, s[20:23], 0 offen offset:4
    buffer_atomic_umax v34, v31, s[20:23], 0 offen offset:8
    buffer_atomic_umax v35, v31, s[20:23], 0 offen offset:12
    buffer_atomic_umax v36, v31, s[20:23], 0 offen offset:16
    buffer_atomic_umax v37, v31, s[20:23], 0 offen offset:20
    buffer_atomic_umax v38, v31, s[20:23], 0 offen offset:24
""")
e("    s_endpgm")

e("""L_producer:
    s_sub_u32 s16, s16, 4                   ; p
    s_mov_b32 s19, 0x000f000f
    v_lshrrev_b32 v2, 3, v0
    v_lshlrev_b32 v2, 11, v2
    v_and_b32 v3, 7, v0
    v_lshrrev_b32 v4, 4, v0                 ; L>>4 (0..3)
    v_xor_b32 v5, v3, v4
    v_lshl_add_u32 v8, v5, 4, v2            ; even
    v_or_b32 v6, 4, v4
    v_xor_b32 v5, v3, v6
    v_lshl_add_u32 v9, v5, 4, v2            ; odd
    s_lshl_b32 s28, s16, 2
    v_add_u32 v5, s28, v4                   ; g
    v_and_b32 v6, 15, v0                    ; c
    v_lshlrev_b32 v10, 13, v5
    v_lshl_add_u32 v10, v6, 4, v10
    v_add_u32 v11, 0x1000, v10
    v_lshrrev_b32 v7, 2, v6                 ; c>>2
    v_and_b32 v12, 3, v6
    v_lshlrev_b32 v12, 4, v12
    v_lshl_add_u32 v12, v5, 10, v12         ; g*1024 + (c&3)*16
    v_add_u32 v12, 0x8000, v12
""")
for r in range(4):
    e(f"    v_xor_b32 v13, {r}, v7")
    e(f"    v_lshl_add_u32 v{16+r}, v13, 6, v12")
    if r:
        e(f"    v_add_u32 v{16+r}, {r*256}, v{16+r}")
e("""    ; s32 = global x offset: (m_tile*256 + p*64)*2048 ; advancing 128 per stage
    s_lshl_b32 s32, s14, 19
    s_lshl_b32 s33, s16, 17
    s_add_u32 s32, s32, s33
    s_lshl_b32 s33, s15, 8
    s_lshl_b32 s35, s16, 13
    s_mov_b32 s30, 0
    s_mov_b32 s34, 0
""")
def pst():
    if PSTAMP:
        e("    s_memtime s[40:41]")
        e("    s_waitcnt lgkmcnt(0)")
        e("    s_mov_b32 s61, m0")
        e("    s_mov_b32 m0, s60")
        e("    s_nop 3")
        e("    v_writelane_b32 v30, s40, m0")
        e("    s_add_u32 s60, s60, 1")
        e("    s_min_u32 s60, s60, 63")
        e("    s_mov_b32 m0, s61")
if PSTAMP:
    e("    s_mov_b32 s60, 0")
    e("    v_mov_b32 v30, 0")
RS = [64, 80]
TMP = 96
def issueX_list():
    g = []
    g.append(["    s_add_u32 m0, s30, s35", "    s_mov_b32 s37, s32", f"    buffer_load_dwordx4 v8, s[48:51], s37 offen lds"])
    for i in range(1, 8):
        g.append(["    s_add_u32 m0, m0, 0x400", "    s_add_u32 s37, s37, 0x4000", f"    buffer_load_dwordx4 v{8+(i&1)}, s[48:51], s37 offen lds"])
    g[-1] += ["    s_add_u32 s32, s32, 128", "    s_add_u32 s30, s30, 49152", "    s_cmp_eq_u32 s30, 147456", "    s_cselect_b32 s30, 0, s30"]
    return g
def issueX():
    for grp in issueX_list():
        for x in grp:
            e(x)
def issueR(st):
    b = RS[st]
    e(f"    buffer_load_dwordx4 {r4(b)}, v10, s[52:55], s33 offen")
    e(f"    buffer_load_dwordx4 {r4(b+4)}, v10, s[52:55], s33 offen offset:2048")
    e(f"    buffer_load_dwordx4 {r4(b+8)}, v11, s[52:55], s33 offen")
    e(f"    buffer_load_dwordx4 {r4(b+12)}, v11, s[52:55], s33 offen offset:2048")
    e("    s_add_u32 s33, s33, 0x20000")
def pruneW(st, withX=False):
    b = RS[st]
    R = lambda r, d: b + 4 * r + d
    M = lambda r, d: TMP + 4 * r + d
    H1 = lambda d: TMP + 16 + d
    L1 = lambda d: TMP + 20 + d
    H2 = lambda d: TMP + 24 + d
    L2 = lambda d: TMP + 28 + d
    ins = []
    for r in range(4):
        ins.append(f"    v_add_u32 v{20+r}, s34, v{16+r}")
    for r in range(4):
        for d in range(4):
            ins.append(f"    v_and_b32 v{M(r,d)}, 0x7fff7fff, v{R(r,d)}")
    for d in range(4):
        ins.append(f"    v_pk_max_u16 v{H1(d)}, v{M(0,d)}, v{M(1,d)}")
    for d in range(4):
        ins.append(f"    v_pk_min_u16 v{L1(d)}, v{M(0,d)}, v{M(1,d)}")
    for d in range(4):
        ins.append(f"    v_pk_max_u16 v{H2(d)}, v{M(2,d)}, v{M(3,d)}")
    for d in range(4):
        ins.append(f"    v_pk_min_u16 v{L2(d)}, v{M(2,d)}, v{M(3,d)}")
    for d in range(4):
        ins.append(f"    v_pk_min_u16 v{H1(d)}, v{H1(d)}, v{H2(d)}")
    for d in range(4):
        ins.append(f"    v_pk_max_u16 v{L1(d)}, v{L1(d)}, v{L2(d)}")
    for d in range(4):
        ins.append(f"    v_pk_max_u16 v{H1(d)}, v{H1(d)}, v{L1(d)}")
    for r in range(4):
        for d in range(4):
            ins.append(f"    v_pk_sub_i16 v{M(r,d)}, v{M(r,d)}, v{H1(d)}")
        for d in range(4):
            ins.append(f"    v_pk_ashrrev_i16 v{M(r,d)}, s19, v{M(r,d)}")
        for d in range(4):
            ins.append(f"    v_bfi_b32 v{M(r,d)}, v{M(r,d)}, 0, v{R(r,d)}")
        ins.append(f"    ds_write_b128 v{20+r}, {r4(M(r,0))}")
    groups = issueX_list() if withX else []
    every = len(ins) // 8
    for n, x in enumerate(ins):
        if groups and n % every == 0:
            for y in groups.pop(0):
                e(y)
        e(x)
    for grp in groups:
        for y in grp:
            e(y)
    e("    s_add_u32 s34, s34, 49152")
    e("    s_cmp_eq_u32 s34, 147456")
    e("    s_cselect_b32 s34, 0, s34")

issueR(0); issueX(); issueR(1); issueX()
e("    s_waitcnt vmcnt(20)")
pruneW(0); issueR(0)
e("    s_waitcnt vmcnt(16) lgkmcnt(0)")
e("    s_barrier                               ; B_-1")
e("    s_mov_b32 s31, 0")
e("L_prod_loop:")
for half in (1, 0):
    pst()
    e("    s_waitcnt vmcnt(12)")
    pst()
    pruneW(half, True)
    pst()
    issueR(half)
    pst()
    e("    s_waitcnt vmcnt(16) lgkmcnt(0)")
    pst()
    e("    s_barrier")
    pst()
e("""    s_add_u32 s31, s31, 1
    s_cmp_lt_u32 s31, 6
    s_cbranch_scc1 L_prod_loop
""")
e("    s_waitcnt vmcnt(12)")
pruneW(1, True); issueR(1)
e("    s_waitcnt vmcnt(16) lgkmcnt(0)")
e("    s_barrier                               ; B_12")
e("    s_waitcnt vmcnt(12)")
pruneW(0, True)
e("    s_waitcnt vmcnt(12) lgkmcnt(0)")
e("    s_barrier                               ; B_13")
e("    s_waitcnt vmcnt(8)")
pruneW(1)
e("    s_waitcnt vmcnt(0) lgkmcnt(0)")
e("    s_barrier                               ; B_14")
if PSTAMP:
    e("""    s_cmp_lg_u32 s16, 0
    s_cbranch_scc1 L_done
    s_mov_b32 s20, s12
    s_and_b32 s21, s13, 0xffff
    s_mov_b32 s22, 0x1000000
    s_mov_b32 s23, 0x00020000
    s_lshl_b32 s28, s2, 8
    s_add_u32 s28, s28, 0x400000
    v_lshlrev_b32 v31, 2, v0
    buffer_store_dword v30, v31, s[20:23], s28 offen""")
e("L_done:")
e("    s_endpgm")

e(f""".section .rodata,"a"
.p2align 6
.amdhsa_kernel {KNAME}
  .amdhsa_next_free_vgpr 256
  .amdhsa_next_free_sgpr 64
  .amdhsa_accum_offset 256
  .amdhsa_group_segment_fixed_size 0
  .amdhsa_kernarg_size 48
  .amdhsa_user_sgpr_count 2
  .amdhsa_user_sgpr_kernarg_segment_ptr 1
  .amdhsa_system_sgpr_workgroup_id_x 1
.end_amdhsa_kernel
""")

open(OUT, "w").write("\n".join(L))
print("wrote", OUT)
```

```python
import sys

STAMP = "--stamp" in sys.argv
NOPF = "--nopf" in sys.argv
DBG = "--dbg" in sys.argv
NOPRUNE = "--noprune" in sys.argv
PAD = "--pad" in sys.argv
STP = ""
for a_ in sys.argv:
    if a_.startswith("--stp="):
        STP = " " + a_[6:].replace("+", " ")
PSTAMP = "--pstamp" in sys.argv
NOPRIO = "--noprio" in sys.argv
args = [a for a in sys.argv[1:] if not a.startswith("--")]
OUT = args[0] if args else "standalone__structured_sparse_n_m__ragged.s"
KNAME = "standalone__structured_sparse_n_m__ragged_kernel"

L = []
def e(s=""):
    L.append(s)

e(f"""; Kernarg layout for this problem (48 bytes, ptrs only, base s[0:1]):
; @launch grid=(256,1,1) block=(512,1,1) lds=147456
.amdgcn_target "amdgcn-amd-amdhsa--gfx950"
.text
.globl {KNAME}
.p2align 8
.type {KNAME},@function
{KNAME}:""")

ACC = 128
def acc(i4, j):
    b = ACC + (i4 * 2 + j) * 16
    return f"v[{b}:{b+15}]"
def frag_regs(s):
    base = 64 + 24 * s
    W = [base, base + 4]
    X = [base + 8 + 4 * i for i in range(4)]
    return W, X
def r4(b):
    return f"v[{b}:{b+3}]"
def r2(b):
    return f"v[{b}:{b+1}]"

NOLOC = "--noloc" in sys.argv
e("""    s_cmp_ge_u32 s2, 256
    s_cbranch_scc1 L_done
    s_load_dwordx4 s[4:7], s[0:1], 0        ; x, w
    s_load_dwordx4 s[8:11], s[0:1], 16      ; b, out
    s_load_dwordx2 s[12:13], s[0:1], 40     ; ws
    v_lshrrev_b32 v1, 6, v0
    v_and_b32 v0, 63, v0                    ; lane
    s_and_b32 s14, s2, 7                    ; xcd
    s_lshr_b32 s15, s2, 3                   ; idx
    s_lshr_b32 s16, s15, 3
    s_lshl_b32 s14, s14, 2
    s_add_u32 s14, s14, s16                 ; m_tile
    s_and_b32 s15, s15, 7                   ; n_tile
    v_readfirstlane_b32 s16, v1
""")
if NOLOC:
    e("    s_lshr_b32 s14, s2, 3")
    e("    s_and_b32 s15, s2, 7")
e("""    s_waitcnt lgkmcnt(0)
    s_mov_b32 s48, s4
    s_and_b32 s49, s5, 0xffff
    s_mov_b32 s50, 0x1000000
    s_mov_b32 s51, 0x00020000
    s_mov_b32 s52, s6
    s_and_b32 s53, s7, 0xffff
    s_mov_b32 s54, 0x200000
    s_mov_b32 s55, 0x00020000
    s_cmp_ge_u32 s16, 4
    s_cbranch_scc1 L_producer
""")

if PAD:
    e("    s_memrealtime s[56:57]")
if DBG:
    e("    s_memrealtime s[56:57]")
if STAMP:
    e("    s_memtime s[40:41]")
    e("    s_memrealtime s[46:47]")
    e("    v_mov_b32 v30, 0")
if not NOPRIO:
    e("    s_setprio 3")
e("""    s_lshr_b32 s17, s16, 1                  ; wm
    s_and_b32 s18, s16, 1                   ; wn
    v_lshrrev_b32 v2, 5, v0                 ; h
    v_and_b32 v3, 31, v0                    ; l&31
""")
e("""    ; bias SRD s[20:23]
    s_mov_b32 s20, s8
    s_and_b32 s21, s9, 0xffff
    s_movk_i32 s22, 0x800
    s_mov_b32 s23, 0x00020000
    s_mov_b32 s24, s10
    s_and_b32 s25, s11, 0xffff
    s_mov_b32 s26, 0x1000000
    s_mov_b32 s27, 0x00020000
    s_lshl_b32 s19, s15, 8
    s_lshl_b32 s28, s18, 7
    s_add_u32 s19, s19, s28                 ; (n_tile*128+wn*64)*2
    v_lshl_add_u32 v4, v2, 5, s19
    buffer_load_dwordx4 v[32:35], v4, s[20:23], 0 offen
    buffer_load_dwordx4 v[36:39], v4, s[20:23], 0 offen offset:16
    buffer_load_dwordx4 v[40:43], v4, s[20:23], 0 offen offset:64
    buffer_load_dwordx4 v[44:47], v4, s[20:23], 0 offen offset:80
""")
if not NOPF:
    e("""    ; L2 prefetch of x: rows m_tile*256 + n_tile*32 + (l&31), line = (q*4+wave)*2 + h
    s_lshl_b32 s28, s14, 19
    s_lshl_b32 s29, s15, 16
    s_add_u32 s28, s28, s29
    s_lshl_b32 s29, s16, 8
    s_add_u32 s28, s28, s29
    v_lshlrev_b32 v4, 11, v3
    v_lshl_add_u32 v4, v2, 7, v4
    buffer_load_dword v31, v4, s[48:51], s28 offen
    buffer_load_dword v31, v4, s[48:51], s28 offen offset:1024
    s_and_b32 s28, s14, 3
    s_lshl_b32 s28, s28, 11
    s_lshl_b32 s29, s15, 8
    s_add_u32 s28, s28, s29
    s_lshl_b32 s29, s16, 18
    s_add_u32 s28, s28, s29
    s_add_u32 s29, s28, 0x100000
    v_lshlrev_b32 v4, 13, v3
    v_lshl_add_u32 v4, v2, 7, v4
    buffer_load_dword v31, v4, s[52:55], s28 offen
    buffer_load_dword v31, v4, s[52:55], s29 offen
""")
e("""    ; x frag base addresses: wm*16384 + (l&31)*128 + ((2kk+h) ^ ((l>>1)&7))*16
    v_bfe_u32 v5, v0, 1, 3                  ; (l>>1)&7
    s_lshl_b32 s28, s17, 14
    v_lshl_add_u32 v6, v3, 7, s28           ; wm*16384 + (l&31)*128
""")
for kk in range(4):
    e(f"    v_or_b32 v7, {2*kk}, v2")
    e(f"    v_xor_b32 v7, v7, v5")
    e(f"    v_lshl_add_u32 v{16+kk}, v7, 4, v6")
e("""    ; W tr-read base: 32768 + (8h + r)*256 + ((2wn+j)^r)*64 + nq*8 ; r=(l&15)>>2, qi=4*((l>>4)&1)+(l&3), nq=4*(qi&1)+(qi>>1)
    v_bfe_u32 v5, v0, 2, 2                  ; r
    v_lshl_add_u32 v6, v2, 3, v5            ; 8h + r
    v_lshlrev_b32 v6, 8, v6
    v_add_u32 v6, 0x8000, v6
    v_and_b32 v7, 1, v0                     ; qi&1
    v_lshlrev_b32 v7, 2, v7                 ; 4*(qi&1)
    v_bfe_u32 v21, v0, 1, 1                 ; (l>>1)&1
    v_bfe_u32 v22, v0, 4, 1                 ; gi
    v_lshl_add_u32 v21, v22, 1, v21
    v_add_u32 v7, v7, v21                   ; nq
    v_lshl_add_u32 v6, v7, 3, v6
    s_lshl_b32 s28, s18, 1                  ; 2wn
    v_xor_b32 v7, s28, v5
    v_lshl_add_u32 v20, v7, 6, v6           ; j=0
    s_add_u32 s28, s28, 1
    v_xor_b32 v7, s28, v5
    v_lshl_add_u32 v21, v7, 6, v6           ; j=1
    v_mov_b32 v8, v16
    v_mov_b32 v9, v17
    v_mov_b32 v10, v18
    v_mov_b32 v11, v19
    v_mov_b32 v12, v20
    v_mov_b32 v13, v21
    s_mov_b32 s30, 0
    s_mov_b32 s31, 0
""")
e("    s_waitcnt vmcnt(%d)" % (0 if NOPF else 4))
for j in range(2):
    for r in range(16):
        src = 32 + j * 8 + (r >> 1)
        for i4 in range(4):
            d = ACC + (i4 * 2 + j) * 16 + r
            if r & 1:
                e(f"    v_and_b32 v{d}, 0xffff0000, v{src}")
            else:
                e(f"    v_lshlrev_b32 v{d}, 16, v{src}")

def reads(s, kk):
    W, X = frag_regs(s)
    out = []
    out.append(f"    ds_read_b64_tr_b16 {r2(W[0])}, v12 offset:{kk*4096}")
    out.append(f"    ds_read_b64_tr_b16 {r2(W[0]+2)}, v12 offset:{kk*4096+1024}")
    out.append(f"    ds_read_b128 {r4(X[0])}, v{8+kk}")
    out.append(f"    ds_read_b64_tr_b16 {r2(W[1])}, v13 offset:{kk*4096}")
    out.append(f"    ds_read_b64_tr_b16 {r2(W[1]+2)}, v13 offset:{kk*4096+1024}")
    out.append(f"    ds_read_b128 {r4(X[1])}, v{8+kk} offset:4096")
    out.append(f"    ds_read_b128 {r4(X[2])}, v{8+kk} offset:8192")
    out.append(f"    ds_read_b128 {r4(X[3])}, v{8+kk} offset:12288")
    return out

def step(s, rd):
    W, X = frag_regs(s)
    order = [(0, 0), (0, 1), (1, 0), (1, 1), (2, 0), (2, 1), (3, 0), (3, 1)]
    rd = list(rd)
    per = [3, 3, 2, 0, 0, 0, 0, 0]
    for n, (i4, j) in enumerate(order):
        e(f"    v_mfma_f32_32x32x16_bf16 {acc(i4,j)}, {r4(W[j])}, {r4(X[i4])}, {acc(i4,j)}")
        for _ in range(per[n]):
            if rd:
                e(rd.pop(0))

if STAMP:
    e("    s_waitcnt lgkmcnt(0)")
    e("    v_writelane_b32 v30, s40, 20")
    e("    v_writelane_b32 v30, s46, 24")
e("    s_barrier")
if DBG:
    e("    s_memrealtime s[58:59]")
if STAMP:
    e("    s_memtime s[40:41]")
    e("    s_waitcnt lgkmcnt(0)")
    e("    v_writelane_b32 v30, s40, 21")
for x in reads(0, 0):
    e(x)
e("L_cons_loop:")
for kk in range(3):
    e("    s_waitcnt lgkmcnt(0)")
    step(kk & 1, reads((kk + 1) & 1, kk + 1))
e("    s_waitcnt lgkmcnt(0)")
e("    s_barrier")
if STAMP:
    e("    s_memtime s[40:41]")
    e("    s_memrealtime s[42:43]")
e("""    s_add_u32 s30, s30, 49152
    s_cmp_eq_u32 s30, 147456
    s_cselect_b32 s30, 0, s30
    v_add_u32 v12, s30, v20
    v_add_u32 v8, s30, v16
    v_add_u32 v13, s30, v21
    v_add_u32 v9, s30, v17
    v_add_u32 v10, s30, v18
    v_add_u32 v11, s30, v19
""")
step(1, reads(0, 0))
if STAMP:
    e("    s_waitcnt lgkmcnt(0)")
    e("    s_mov_b32 m0, s31")
    e("    s_nop 3")
    e("    v_writelane_b32 v30, s40, m0")
    e("    s_add_u32 m0, s31, 32")
    e("    s_nop 3")
    e("    v_writelane_b32 v30, s42, m0")
e("""    s_add_u32 s31, s31, 1
    s_cmp_lt_u32 s31, 15
    s_cbranch_scc1 L_cons_loop
""")
for kk in range(3):
    e("    s_waitcnt lgkmcnt(0)")
    step(kk & 1, reads((kk + 1) & 1, kk + 1))
e("    s_waitcnt lgkmcnt(0)")
step(1, [])
if DBG:
    e("    s_memrealtime s[60:61]")
if STAMP:
    e("    s_memtime s[40:41]")
    e("    s_waitcnt lgkmcnt(0)")
    e("    v_writelane_b32 v30, s40, 22")
e("""    ; epilogue: region = 49152 + wave*16384
    s_lshl_b32 s28, s16, 14
    s_add_u32 s28, s28, 49152
    v_and_b32 v5, 7, v0                     ; l&7
    v_lshl_add_u32 v6, v3, 7, s28           ; region + (l&31)*128
    v_lshlrev_b32 v7, 1, v2                 ; 2h
""")
for j in range(2):
    for ee in range(2):
        e(f"    v_or_b32 v21, {4*j+ee}, v7")
        e(f"    v_xor_b32 v21, v21, v5")
        e(f"    v_lshl_add_u32 v{24+j*2+ee}, v21, 4, v6")
e("""    v_lshrrev_b32 v21, 3, v0
    v_and_b32 v22, 7, v21
    v_xor_b32 v22, v22, v5
    v_lshl_add_u32 v28, v21, 7, s28
    v_lshl_add_u32 v28, v22, 4, v28
    v_lshlrev_b32 v29, 11, v21
    v_lshl_add_u32 v29, v5, 4, v29
    s_lshl_b32 s32, s14, 19
    s_lshl_b32 s33, s17, 18
    s_add_u32 s32, s32, s33
    s_add_u32 s32, s32, s19
    s_nop 7
    s_nop 7
""")
def ep_write(i4):
    for j in range(2):
        b = ACC + (i4 * 2 + j) * 16
        tb = 32 + ((i4 * 2 + j) & 3) * 8
        for q in range(8):
            e(f"    v_cvt_pk_bf16_f32 v{tb+q}, v{b+2*q}, v{b+2*q+1}")
        e(f"    ds_write_b128 v{24+j*2}, {r4(tb)} offset:{i4*4096}")
        e(f"    ds_write_b128 v{24+j*2+1}, {r4(tb+4)} offset:{i4*4096}")
def ep_read(i4):
    for q in range(4):
        e(f"    ds_read_b128 {r4(64+16*i4+4*q)}, v28 offset:{(i4*4+q)*1024}")
def ep_store(i4, pending):
    for q in range(4):
        e(f"    s_waitcnt lgkmcnt({pending + 3 - q})")
        e(f"    buffer_store_dwordx4 {r4(64+16*i4+4*q)}, v29, s[24:27], s32 offen{STP}")
        e(f"    s_add_u32 s32, s32, 16384")
ep_write(0); ep_read(0)
ep_write(1); ep_read(1); ep_store(0, 8)
ep_write(2); ep_read(2); ep_store(1, 8)
ep_write(3); ep_read(3); ep_store(2, 8)
ep_store(3, 0)
if STAMP:
    e("""    s_waitcnt vmcnt(0)
    s_memtime s[40:41]
    s_memrealtime s[46:47]
    s_waitcnt lgkmcnt(0)
    v_writelane_b32 v30, s40, 23
    v_writelane_b32 v30, s46, 25
    s_cmp_lg_u32 s16, 0
    s_cbranch_scc1 L_nostamp
    s_mov_b32 s20, s12
    s_and_b32 s21, s13, 0xffff
    s_mov_b32 s22, 0x1000000
    s_mov_b32 s23, 0x00020000
    s_lshl_b32 s28, s2, 8
    s_add_u32 s28, s28, 0x400000
    v_lshlrev_b32 v31, 2, v0
    buffer_store_dword v30, v31, s[20:23], s28 offen
L_nostamp:""")
if DBG:
    e("""    s_waitcnt vmcnt(0)
    s_memrealtime s[62:63]
    s_load_dwordx2 s[36:37], s[0:1], 32
    s_waitcnt lgkmcnt(0)
    s_mov_b32 s20, s36
    s_and_b32 s21, s37, 0xffff
    s_movk_i32 s22, 0x100
    s_mov_b32 s23, 0x00020000
    s_not_b32 s38, s56
    v_mov_b32 v32, s38
    v_mov_b32 v33, s62
    v_mov_b32 v34, s58
    v_mov_b32 v35, s60
    s_not_b32 s38, s58
    v_mov_b32 v36, s38
    s_not_b32 s38, s60
    v_mov_b32 v37, s38
    v_mov_b32 v38, s56
    v_mov_b32 v31, 0
    s_mov_b64 exec, 1
    buffer_atomic_umax v32, v31, s[20:23], 0 offen
    buffer_atomic_umax v33, v31, s[20:23], 0 offen offset:4
    buffer_atomic_umax v34, v31, s[20:23], 0 offen offset:8
    buffer_atomic_umax v35, v31, s[20:23], 0 offen offset:12
    buffer_atomic_umax v36, v31, s[20:23], 0 offen offset:16
    buffer_atomic_umax v37, v31, s[20:23], 0 offen offset:20
    buffer_atomic_umax v38, v31, s[20:23], 0 offen offset:24
""")
if PAD:
    e("""    s_waitcnt vmcnt(0)
L_pad:
    s_memrealtime s[58:59]
    s_waitcnt lgkmcnt(0)
    s_sub_u32 s60, s58, s56
    s_cmp_lt_u32 s60, 4000
    s_cbranch_scc1 L_pad
""")
e("    s_endpgm")

e("""L_producer:
    s_sub_u32 s16, s16, 4                   ; p
    s_mov_b32 s19, 0x000f000f
    v_lshrrev_b32 v2, 3, v0
    v_lshlrev_b32 v2, 11, v2
    v_and_b32 v3, 7, v0
    v_lshrrev_b32 v4, 4, v0                 ; L>>4 (0..3)
    v_xor_b32 v5, v3, v4
    v_lshl_add_u32 v8, v5, 4, v2            ; even
    v_or_b32 v6, 4, v4
    v_xor_b32 v5, v3, v6
    v_lshl_add_u32 v9, v5, 4, v2            ; odd
    s_lshl_b32 s28, s16, 2
    v_add_u32 v5, s28, v4                   ; g
    v_and_b32 v6, 15, v0                    ; c
    v_lshlrev_b32 v10, 13, v5
    v_lshl_add_u32 v10, v6, 4, v10
    v_add_u32 v11, 0x1000, v10
    v_lshrrev_b32 v7, 2, v6                 ; c>>2
    v_and_b32 v12, 3, v6
    v_lshlrev_b32 v12, 4, v12
    v_lshl_add_u32 v12, v5, 10, v12         ; g*1024 + (c&3)*16
    v_add_u32 v12, 0x8000, v12
""")
for r in range(4):
    e(f"    v_xor_b32 v13, {r}, v7")
    e(f"    v_lshl_add_u32 v{16+r}, v13, 6, v12")
    if r:
        e(f"    v_add_u32 v{16+r}, {r*256}, v{16+r}")
e("""    ; s32 = global x offset: (m_tile*256 + p*64)*2048 ; advancing 128 per stage
    s_lshl_b32 s32, s14, 19
    s_lshl_b32 s33, s16, 17
    s_add_u32 s32, s32, s33
    s_lshl_b32 s33, s15, 8
    s_lshl_b32 s35, s16, 13
    s_mov_b32 s30, 0
    s_mov_b32 s34, 0
""")
def pst():
    if PSTAMP:
        e("    s_memtime s[40:41]")
        e("    s_waitcnt lgkmcnt(0)")
        e("    s_mov_b32 s61, m0")
        e("    s_mov_b32 m0, s60")
        e("    s_nop 3")
        e("    v_writelane_b32 v30, s40, m0")
        e("    s_add_u32 s60, s60, 1")
        e("    s_min_u32 s60, s60, 63")
        e("    s_mov_b32 m0, s61")
if PSTAMP:
    e("    s_mov_b32 s60, 0")
    e("    v_mov_b32 v30, 0")
RS = [64, 80]
TMP = 96
def issueX_list():
    g = []
    g.append(["    s_add_u32 m0, s30, s35", "    s_mov_b32 s37, s32", f"    buffer_load_dwordx4 v8, s[48:51], s37 offen lds"])
    for i in range(1, 8):
        g.append(["    s_add_u32 m0, m0, 0x400", "    s_add_u32 s37, s37, 0x4000", f"    buffer_load_dwordx4 v{8+(i&1)}, s[48:51], s37 offen lds"])
    g[-1] += ["    s_add_u32 s32, s32, 128", "    s_add_u32 s30, s30, 49152", "    s_cmp_eq_u32 s30, 147456", "    s_cselect_b32 s30, 0, s30"]
    return g
def issueX():
    for grp in issueX_list():
        for x in grp:
            e(x)
def issueR(st):
    b = RS[st]
    e(f"    buffer_load_dwordx4 {r4(b)}, v10, s[52:55], s33 offen")
    e(f"    buffer_load_dwordx4 {r4(b+4)}, v10, s[52:55], s33 offen offset:2048")
    e(f"    buffer_load_dwordx4 {r4(b+8)}, v11, s[52:55], s33 offen")
    e(f"    buffer_load_dwordx4 {r4(b+12)}, v11, s[52:55], s33 offen offset:2048")
    e("    s_add_u32 s33, s33, 0x20000")
def pruneW(st, withX=False):
    b = RS[st]
    R = lambda r, d: b + 4 * r + d
    M = lambda r, d: TMP + 4 * r + d
    H1 = lambda d: TMP + 16 + d
    L1 = lambda d: TMP + 20 + d
    H2 = lambda d: TMP + 24 + d
    L2 = lambda d: TMP + 28 + d
    ins = []
    for r in range(4):
        ins.append(f"    v_add_u32 v{20+r}, s34, v{16+r}")
    for r in range(4):
        for d in range(4):
            ins.append(f"    v_and_b32 v{M(r,d)}, 0x7fff7fff, v{R(r,d)}")
    for d in range(4):
        ins.append(f"    v_pk_max_u16 v{H1(d)}, v{M(0,d)}, v{M(1,d)}")
    for d in range(4):
        ins.append(f"    v_pk_min_u16 v{L1(d)}, v{M(0,d)}, v{M(1,d)}")
    for d in range(4):
        ins.append(f"    v_pk_max_u16 v{H2(d)}, v{M(2,d)}, v{M(3,d)}")
    for d in range(4):
        ins.append(f"    v_pk_min_u16 v{L2(d)}, v{M(2,d)}, v{M(3,d)}")
    for d in range(4):
        ins.append(f"    v_pk_min_u16 v{H1(d)}, v{H1(d)}, v{H2(d)}")
    for d in range(4):
        ins.append(f"    v_pk_max_u16 v{L1(d)}, v{L1(d)}, v{L2(d)}")
    for d in range(4):
        ins.append(f"    v_pk_max_u16 v{H1(d)}, v{H1(d)}, v{L1(d)}")
    for r in range(4):
        for d in range(4):
            ins.append(f"    v_pk_sub_i16 v{M(r,d)}, v{M(r,d)}, v{H1(d)}")
        for d in range(4):
            ins.append(f"    v_pk_ashrrev_i16 v{M(r,d)}, s19, v{M(r,d)}")
        for d in range(4):
            ins.append(f"    v_bfi_b32 v{M(r,d)}, v{M(r,d)}, 0, v{R(r,d)}")
        ins.append(f"    ds_write_b128 v{20+r}, {r4(M(r,0))}")
    groups = issueX_list() if withX else []
    every = len(ins) // 8
    for n, x in enumerate(ins):
        if groups and n % every == 0:
            for y in groups.pop(0):
                e(y)
        e(x)
    for grp in groups:
        for y in grp:
            e(y)
    e("    s_add_u32 s34, s34, 49152")
    e("    s_cmp_eq_u32 s34, 147456")
    e("    s_cselect_b32 s34, 0, s34")

issueR(0); issueX(); issueR(1); issueX()
e("    s_waitcnt vmcnt(20)")
pruneW(0); issueR(0)
e("    s_waitcnt vmcnt(16) lgkmcnt(0)")
e("    s_barrier                               ; B_-1")
e("    s_mov_b32 s31, 0")
e("L_prod_loop:")
for half in (1, 0):
    pst()
    e("    s_waitcnt vmcnt(12)")
    pst()
    pruneW(half, True)
    pst()
    issueR(half)
    pst()
    e("    s_waitcnt vmcnt(16) lgkmcnt(0)")
    pst()
    e("    s_barrier")
    pst()
e("""    s_add_u32 s31, s31, 1
    s_cmp_lt_u32 s31, 6
    s_cbranch_scc1 L_prod_loop
""")
e("    s_waitcnt vmcnt(12)")
pruneW(1, True); issueR(1)
e("    s_waitcnt vmcnt(16) lgkmcnt(0)")
e("    s_barrier                               ; B_12")
e("    s_waitcnt vmcnt(12)")
pruneW(0, True)
e("    s_waitcnt vmcnt(12) lgkmcnt(0)")
e("    s_barrier                               ; B_13")
e("    s_waitcnt vmcnt(8)")
pruneW(1)
e("    s_waitcnt vmcnt(0) lgkmcnt(0)")
e("    s_barrier                               ; B_14")
if PSTAMP:
    e("""    s_cmp_lg_u32 s16, 0
    s_cbranch_scc1 L_done
    s_mov_b32 s20, s12
    s_and_b32 s21, s13, 0xffff
    s_mov_b32 s22, 0x1000000
    s_mov_b32 s23, 0x00020000
    s_lshl_b32 s28, s2, 8
    s_add_u32 s28, s28, 0x400000
    v_lshlrev_b32 v31, 2, v0
    buffer_store_dword v30, v31, s[20:23], s28 offen""")
e("L_done:")
e("    s_endpgm")

e(f""".section .rodata,"a"
.p2align 6
.amdhsa_kernel {KNAME}
  .amdhsa_next_free_vgpr 256
  .amdhsa_next_free_sgpr 64
  .amdhsa_accum_offset 256
  .amdhsa_group_segment_fixed_size 0
  .amdhsa_kernarg_size 48
  .amdhsa_user_sgpr_count 2
  .amdhsa_user_sgpr_kernarg_segment_ptr 1
  .amdhsa_system_sgpr_workgroup_id_x 1
.end_amdhsa_kernel
""")

open(OUT, "w").write("\n".join(L))
print("wrote", OUT)
```

```python
import sys

STAMP = "--stamp" in sys.argv
SKEW = "--noskew" not in sys.argv
BSTAMP = "--bstamp" in sys.argv
PSTAMP = "--pstamp" in sys.argv
FAKEB128 = "--fakeb128" in sys.argv
NOW = "--now" in sys.argv
NOPRUNE = "--noprune" in sys.argv
STP = " sc1"
STPB = None
PRIO = 3
for a_ in sys.argv:
    if a_.startswith("--stp="):
        STP = (" " + a_[6:].replace("+", " ")) if a_[6:] else ""
    if a_.startswith("--stpb="):
        STPB = (" " + a_[7:].replace("+", " ")) if a_[7:] else ""
    if a_.startswith("--prio="):
        PRIO = int(a_[7:])
args = [a for a in sys.argv[1:] if not a.startswith("--")]
OUT = args[0] if args else "standalone__structured_sparse_n_m__ragged.s"
KNAME = "standalone__structured_sparse_n_m__ragged_kernel"

L = []
def e(s=""):
    L.append(s)

e(f"""; Kernarg layout for this problem (48 bytes, ptrs only, base s[0:1]):
; @launch grid=(256,1,1) block=(512,1,1) lds=163840
.amdgcn_target "amdgcn-amd-amdhsa--gfx950"
.text
.globl {KNAME}
.p2align 8
.type {KNAME},@function
{KNAME}:""")

WBASE = 131072
ACC = 128
def acc(i4, j):
    b = ACC + (i4 * 2 + j) * 16
    return f"v[{b}:{b+15}]"
def frag_regs(s):
    base = 64 + 24 * s
    W = [base, base + 4]
    X = [base + 8 + 4 * i for i in range(4)]
    return W, X
XA = [8, 9, 10, 11]
WA = [12, 13]
def r4(b):
    return f"v[{b}:{b+3}]"
def r2(b):
    return f"v[{b}:{b+1}]"

e("""    s_cmp_ge_u32 s2, 256
    s_cbranch_scc1 L_done
    s_load_dwordx4 s[4:7], s[0:1], 0        ; x, w
    s_load_dwordx4 s[8:11], s[0:1], 16      ; b, out
    s_load_dwordx2 s[12:13], s[0:1], 40     ; ws
    v_lshrrev_b32 v1, 6, v0
    v_and_b32 v0, 63, v0                    ; lane
    s_and_b32 s14, s2, 7                    ; xcd
    s_lshr_b32 s15, s2, 3                   ; idx
    s_lshr_b32 s16, s15, 3
    s_lshl_b32 s14, s14, 2
    s_add_u32 s14, s14, s16                 ; m_tile
    s_and_b32 s15, s15, 7                   ; n_tile
    v_readfirstlane_b32 s16, v1
    s_waitcnt lgkmcnt(0)
    s_cmp_ge_u32 s16, 4
    s_cbranch_scc1 L_producer
""")

if STAMP:
    e("    s_memtime s[40:41]")
    e("    s_memrealtime s[46:47]")
    e("    v_mov_b32 v30, 0")
if PRIO:
    e(f"    s_setprio {PRIO}")
e("""    s_lshr_b32 s17, s16, 1                  ; wm
    s_and_b32 s18, s16, 1                   ; wn
    v_lshrrev_b32 v2, 5, v0                 ; h
    v_and_b32 v3, 31, v0                    ; l&31
    s_mov_b32 s20, s8
    s_and_b32 s21, s9, 0xffff
    s_movk_i32 s22, 0x800
    s_mov_b32 s23, 0x00020000
    s_mov_b32 s24, s10
    s_and_b32 s25, s11, 0xffff
    s_mov_b32 s26, 0x1000000
    s_mov_b32 s27, 0x00020000
    s_lshl_b32 s19, s15, 8
    s_lshl_b32 s28, s18, 7
    s_add_u32 s19, s19, s28                 ; (n_tile*128+wn*64)*2
    v_lshl_add_u32 v4, v2, 5, s19
    buffer_load_dwordx4 v[32:35], v4, s[20:23], 0 offen
    buffer_load_dwordx4 v[36:39], v4, s[20:23], 0 offen offset:16
    buffer_load_dwordx4 v[40:43], v4, s[20:23], 0 offen offset:64
    buffer_load_dwordx4 v[44:47], v4, s[20:23], 0 offen offset:80
    v_bfe_u32 v5, v0, 1, 3                  ; (l>>1)&7
    s_lshl_b32 s28, s17, 14
    v_lshl_add_u32 v6, v3, 7, s28           ; wm*16384 + (l&31)*128
""")
for kk in range(4):
    e(f"    v_or_b32 v7, {2*kk}, v2")
    e(f"    v_xor_b32 v7, v7, v5")
    e(f"    v_lshl_add_u32 v{XA[kk]}, v7, 4, v6")
e(f"""    v_bfe_u32 v5, v0, 2, 2                  ; r
    v_lshl_add_u32 v6, v2, 3, v5            ; 8h + r
    v_lshlrev_b32 v6, 8, v6
    v_add_u32 v6, {WBASE}, v6
    v_and_b32 v7, 1, v0                     ; qi&1
    v_lshlrev_b32 v7, 2, v7                 ; 4*(qi&1)
    v_bfe_u32 v21, v0, 1, 1                 ; (l>>1)&1
    v_bfe_u32 v22, v0, 4, 1                 ; gi
    v_lshl_add_u32 v21, v22, 1, v21         ; qi>>1
    v_add_u32 v7, v7, v21                   ; nq
    v_lshl_add_u32 v6, v7, 3, v6
    s_lshl_b32 s28, s18, 1                  ; 2wn
    v_xor_b32 v7, s28, v5
    v_lshl_add_u32 v{WA[0]}, v7, 6, v6
    s_add_u32 s28, s28, 1
    v_xor_b32 v7, s28, v5
    v_lshl_add_u32 v{WA[1]}, v7, 6, v6
    v_lshlrev_b32 v14, 4, v0
    v_add_u32 v14, {WBASE}, v14
    s_mov_b32 s30, 0
    s_mov_b32 s31, 0
    s_movk_i32 s29, 0x4000                  ; W delta
    s_lshl_b32 s28, s16, 14
    v_and_b32 v5, 7, v0                     ; l&7
    v_lshl_add_u32 v6, v3, 7, s28           ; region + (l&31)*128
    v_lshlrev_b32 v7, 1, v2                 ; 2h
""")
for j in range(2):
    for ee in range(2):
        e(f"    v_or_b32 v21, {4*j+ee}, v7")
        e(f"    v_xor_b32 v21, v21, v5")
        e(f"    v_lshl_add_u32 v{24+j*2+ee}, v21, 4, v6")
e("""    v_lshrrev_b32 v21, 3, v0
    v_and_b32 v22, 7, v21
    v_xor_b32 v22, v22, v5
    v_lshl_add_u32 v28, v21, 7, s28
    v_lshl_add_u32 v28, v22, 4, v28
    v_lshlrev_b32 v29, 11, v21
    v_lshl_add_u32 v29, v5, 4, v29
    s_lshl_b32 s32, s14, 19
    s_lshl_b32 s33, s17, 18
    s_add_u32 s32, s32, s33
    s_add_u32 s32, s32, s19
    s_waitcnt vmcnt(0)
""")
for j in range(2):
    for r in range(16):
        src = 32 + j * 8 + (r >> 1)
        for i4 in range(4):
            d = ACC + (i4 * 2 + j) * 16 + r
            if r & 1:
                e(f"    v_and_b32 v{d}, 0xffff0000, v{src}")
            else:
                e(f"    v_lshlrev_b32 v{d}, 16, v{src}")

def reads(s, kk, i4s=(0, 1, 2, 3), xoff=0, woff=0):
    W, X = frag_regs(s)
    out = []
    out.append(f"    ds_read_b64_tr_b16 {r2(W[0])}, v{WA[0]} offset:{woff+kk*4096}")
    out.append(f"    ds_read_b64_tr_b16 {r2(W[0]+2)}, v{WA[0]} offset:{woff+kk*4096+1024}")
    out.append(f"    ds_read_b128 {r4(X[i4s[0]])}, v{XA[kk]} offset:{xoff+i4s[0]*4096}")
    out.append(f"    ds_read_b64_tr_b16 {r2(W[1])}, v{WA[1]} offset:{woff+kk*4096}")
    out.append(f"    ds_read_b64_tr_b16 {r2(W[1]+2)}, v{WA[1]} offset:{woff+kk*4096+1024}")
    for i4 in i4s[1:]:
        out.append(f"    ds_read_b128 {r4(X[i4])}, v{XA[kk]} offset:{xoff+i4*4096}")
    if FAKEB128:
        out = [o for o in out if "tr_b16" not in o]
        out.insert(0, f"    ds_read_b128 {r4(W[0])}, v14 offset:{woff+kk*4096}")
        out.insert(2, f"    ds_read_b128 {r4(W[1])}, v14 offset:{woff+kk*4096+1024}")
    return out

def step(s, rd, i4s=(0, 1, 2, 3), fill=None, per=None):
    W, X = frag_regs(s)
    order = [(i4, j) for i4 in i4s for j in range(2)]
    rd = list(rd)
    fill = list(fill) if fill else []
    nm = len(order)
    if per is None:
        per = [3, 3, 2] + [0] * 8
    for n, (i4, j) in enumerate(order):
        e(f"    v_mfma_f32_32x32x16_bf16 {acc(i4,j)}, {r4(W[j])}, {r4(X[i4])}, {acc(i4,j)}")
        for _ in range(per[n]):
            if rd:
                e(rd.pop(0))
        if n == nm - 1:
            while rd:
                e(rd.pop(0))
        k = (len(fill) + (nm - n) - 1) // (nm - n) if fill else 0
        for _ in range(k):
            if fill:
                e(fill.pop(0))

if STAMP:
    e("    s_waitcnt lgkmcnt(0)")
    e("    v_writelane_b32 v30, s40, 20")
    e("    v_writelane_b32 v30, s46, 24")
e("    s_barrier")
if STAMP:
    e("    s_memtime s[40:41]")
    e("    s_waitcnt lgkmcnt(0)")
    e("    v_writelane_b32 v30, s40, 21")
for x in reads(0, 0):
    e(x)
def advance():
    e("""    s_add_u32 s30, s30, 0x8000
    s_mov_b32 s28, 0x8000
    s_cmp_eq_u32 s30, 0x20000
    s_cselect_b32 s30, 0, s30
    s_cselect_b32 s28, 0xfffe8000, s28""")
    for j in range(2):
        e(f"    v_add_u32 v{WA[j]}, s29, v{WA[j]}")
    for kk in range(4):
        e(f"    v_add_u32 v{XA[kk]}, s28, v{XA[kk]}")
    e("    s_sub_u32 s29, 0, s29")

NLOOP = 14 if SKEW else 15
if BSTAMP:
    e("    s_mov_b32 s62, 0")
e("L_cons_loop:")
for kk in range(3):
    e("    s_waitcnt lgkmcnt(0)")
    step(kk & 1, reads((kk + 1) & 1, kk + 1))
if BSTAMP:
    e("    s_memtime s[56:57]")
e("    s_waitcnt lgkmcnt(0)")
e("    s_barrier")
if BSTAMP:
    e("    s_memtime s[58:59]")
advance()
if SKEW:
    pass
step(1, reads(0, 0))
if BSTAMP:
    e("    s_waitcnt lgkmcnt(0)")
    e("    s_sub_u32 s58, s58, s56")
    e("    s_add_u32 s62, s62, s58")
e(f"""    s_add_u32 s31, s31, 1
    s_cmp_lt_u32 s31, {NLOOP}
    s_cbranch_scc1 L_cons_loop
""")

def ep_write(i4):
    out = []
    for j in range(2):
        b = ACC + (i4 * 2 + j) * 16
        tb = 32 + ((i4 * 2 + j) & 3) * 8
        for q in range(8):
            out.append(f"    v_cvt_pk_bf16_f32 v{tb+q}, v{b+2*q}, v{b+2*q+1}")
        out.append(f"    ds_write_b128 v{24+j*2}, {r4(tb)} offset:{i4*4096}")
        out.append(f"    ds_write_b128 v{24+j*2+1}, {r4(tb+4)} offset:{i4*4096}")
    return out
def ep_read(i4):
    return [f"    ds_read_b128 {r4(ACC+32*i4+4*q)}, v28 offset:{(i4*4+q)*1024}" for q in range(4)]
def ep_store(i4):
    out = []
    for q in range(4):
        out.append(f"    buffer_store_dwordx4 {r4(ACC+32*i4+4*q)}, v29, s[24:27], s32 offen{STP if (i4 < 2 or STPB is None) else STPB}")
        out.append(f"    s_add_u32 s32, s32, 16384")
    return out

if not SKEW:
    for kk in range(3):
        e("    s_waitcnt lgkmcnt(0)")
        step(kk & 1, reads((kk + 1) & 1, kk + 1))
    e("    s_waitcnt lgkmcnt(0)")
    step(1, [])
    if STAMP:
        e("    s_memtime s[40:41]")
        e("    s_waitcnt lgkmcnt(0)")
        e("    v_writelane_b32 v30, s40, 22")
    e("    s_nop 7\n    s_nop 7")
    for i4 in range(4):
        for x in ep_write(i4) + ep_read(i4):
            e(x)
        if i4:
            e("    s_waitcnt lgkmcnt(8)")
            for x in ep_store(i4 - 1):
                e(x)
    e("    s_waitcnt lgkmcnt(0)")
    for x in ep_store(3):
        e(x)
else:
    A = (0, 1); B = (2, 3)
    seq = [(st, kk) for st in range(2) for kk in range(4)]
    def rd_for(half, idx, s):
        st, kk = seq[idx]
        return reads(s, kk, half, xoff=st * 32768, woff=st * 16384)
    for idx in range(8):
        s = idx & 1
        e("    s_waitcnt lgkmcnt(0)")
        if idx == 3:
            e("    s_barrier")
        if idx < 7:
            nxt = rd_for(A, idx + 1, s ^ 1)
        else:
            nxt = rd_for(B, 0, s ^ 1)
        step(s, nxt, A, per=[3, 3, 0, 0])
    fills = {
        0: ["    s_nop 7", "    s_nop 3"] + ep_write(0)[:10],
        1: ep_write(0)[10:],
        2: ep_write(1)[:10],
        3: ep_write(1)[10:],
        4: ep_read(0) + ep_read(1),
        5: ep_store(0),
        6: ep_store(1),
        7: [],
    }
    for idx in range(8):
        s = idx & 1
        e("    s_waitcnt lgkmcnt(0)")
        nxt = rd_for(B, idx + 1, s ^ 1) if idx < 7 else []
        step(s, nxt, B, fill=fills[idx], per=[3, 3, 0, 0])
    if STAMP:
        e("    s_memtime s[40:41]")
        e("    s_waitcnt lgkmcnt(0)")
        e("    v_writelane_b32 v30, s40, 22")
    e("    s_nop 7\n    s_nop 7")
    for x in ep_write(2) + ep_read(2) + ep_write(3) + ep_read(3):
        e(x)
    e("    s_waitcnt lgkmcnt(8)")
    for x in ep_store(2):
        e(x)
    e("    s_waitcnt lgkmcnt(0)")
    for x in ep_store(3):
        e(x)
if STAMP:
    e("""    s_waitcnt vmcnt(0)
    s_memtime s[40:41]
    s_memrealtime s[46:47]
    s_waitcnt lgkmcnt(0)
    v_writelane_b32 v30, s40, 23
    v_writelane_b32 v30, s46, 25
    v_writelane_b32 v30, s62, 26
    s_cmp_lg_u32 s16, 0
    s_cbranch_scc1 L_nostamp
    s_mov_b32 s20, s12
    s_and_b32 s21, s13, 0xffff
    s_mov_b32 s22, 0x1000000
    s_mov_b32 s23, 0x00020000
    s_lshl_b32 s28, s2, 8
    s_add_u32 s28, s28, 0x400000
    v_lshlrev_b32 v31, 2, v0
    buffer_store_dword v30, v31, s[20:23], s28 offen
L_nostamp:""")
e("    s_endpgm")

e(f"""L_producer:
    s_sub_u32 s16, s16, 4                   ; p (0..3)
    s_mov_b32 s48, s4
    s_and_b32 s49, s5, 0xffff
    s_mov_b32 s50, 0x1000000
    s_mov_b32 s51, 0x00020000
    s_mov_b32 s52, s6
    s_and_b32 s53, s7, 0xffff
    s_mov_b32 s54, 0x200000
    s_mov_b32 s55, 0x00020000
    s_mov_b32 s19, 0x000f000f
    v_lshrrev_b32 v2, 3, v0
    v_lshlrev_b32 v2, 11, v2
    v_and_b32 v3, 7, v0
    v_lshrrev_b32 v4, 4, v0                 ; L>>4 (0..3)
    v_xor_b32 v5, v3, v4
    v_lshl_add_u32 v8, v5, 4, v2            ; even
    v_or_b32 v6, 4, v4
    v_xor_b32 v5, v3, v6
    v_lshl_add_u32 v9, v5, 4, v2            ; odd
    s_lshl_b32 s28, s16, 2
    v_add_u32 v5, s28, v4                   ; g
    v_and_b32 v6, 15, v0                    ; c
    v_lshlrev_b32 v10, 13, v5
    v_lshl_add_u32 v10, v6, 4, v10
    v_add_u32 v11, 0x1000, v10
    v_lshrrev_b32 v7, 2, v6                 ; c>>2
    v_and_b32 v12, 3, v6
    v_lshlrev_b32 v12, 4, v12
    v_lshl_add_u32 v12, v5, 10, v12
    v_add_u32 v12, {WBASE}, v12
""")
for r in range(4):
    e(f"    v_xor_b32 v13, {r}, v7")
    e(f"    v_lshl_add_u32 v{16+r}, v13, 6, v12")
    if r:
        e(f"    v_add_u32 v{16+r}, {r*256}, v{16+r}")
e("""    s_lshl_b32 s32, s14, 19
    s_lshl_b32 s33, s16, 17
    s_add_u32 s32, s32, s33
    s_lshl_b32 s33, s15, 8
    s_lshl_b32 s35, s16, 13
    s_mov_b32 s30, 0
""")
def pst():
    if PSTAMP:
        e("    s_memtime s[40:41]")
        e("    s_waitcnt lgkmcnt(0)")
        e("    s_mov_b32 s61, m0")
        e("    s_mov_b32 m0, s60")
        e("    s_nop 3")
        e("    v_writelane_b32 v30, s40, m0")
        e("    s_add_u32 s60, s60, 1")
        e("    s_min_u32 s60, s60, 63")
        e("    s_mov_b32 m0, s61")
if PSTAMP:
    e("    s_mov_b32 s60, 0")
    e("    v_mov_b32 v30, 0")
RS = [64, 80, 96]
TMP = 112
def issueX_list():
    g = []
    g.append(["    s_add_u32 m0, s30, s35", "    s_mov_b32 s37, s32", f"    buffer_load_dwordx4 v8, s[48:51], s37 offen lds"])
    for i in range(1, 8):
        g.append(["    s_add_u32 m0, m0, 0x400", "    s_add_u32 s37, s37, 0x4000", f"    buffer_load_dwordx4 v{8+(i&1)}, s[48:51], s37 offen lds"])
    g[-1] += ["    s_add_u32 s32, s32, 128", "    s_add_u32 s30, s30, 0x8000", "    s_and_b32 s30, s30, 0x1ffff"]
    return g
def issueX():
    for grp in issueX_list():
        for x in grp:
            e(x)
def issueR(st):
    b = RS[st]
    e(f"    buffer_load_dwordx4 {r4(b)}, v10, s[52:55], s33 offen")
    e(f"    buffer_load_dwordx4 {r4(b+4)}, v10, s[52:55], s33 offen offset:2048")
    e(f"    buffer_load_dwordx4 {r4(b+8)}, v11, s[52:55], s33 offen")
    e(f"    buffer_load_dwordx4 {r4(b+12)}, v11, s[52:55], s33 offen offset:2048")
    e("    s_add_u32 s33, s33, 0x20000")
def pruneW(st, wbuf, withX=False):
    b = RS[st]
    R = lambda r, d: b + 4 * r + d
    M = lambda r, d: TMP + 4 * r + d
    H1 = lambda d: TMP + 16 + d
    L1 = lambda d: TMP + 20 + d
    H2 = lambda d: TMP + 24 + d
    L2 = lambda d: TMP + 28 + d
    ins = []
    for r in range(4):
        for d in range(4):
            ins.append(f"    v_and_b32 v{M(r,d)}, 0x7fff7fff, v{R(r,d)}")
    for d in range(4):
        ins.append(f"    v_pk_max_u16 v{H1(d)}, v{M(0,d)}, v{M(1,d)}")
    for d in range(4):
        ins.append(f"    v_pk_min_u16 v{L1(d)}, v{M(0,d)}, v{M(1,d)}")
    for d in range(4):
        ins.append(f"    v_pk_max_u16 v{H2(d)}, v{M(2,d)}, v{M(3,d)}")
    for d in range(4):
        ins.append(f"    v_pk_min_u16 v{L2(d)}, v{M(2,d)}, v{M(3,d)}")
    for d in range(4):
        ins.append(f"    v_pk_min_u16 v{H1(d)}, v{H1(d)}, v{H2(d)}")
    for d in range(4):
        ins.append(f"    v_pk_max_u16 v{L1(d)}, v{L1(d)}, v{L2(d)}")
    for d in range(4):
        ins.append(f"    v_pk_max_u16 v{H1(d)}, v{H1(d)}, v{L1(d)}")
    for r in range(4):
        for d in range(4):
            ins.append(f"    v_pk_sub_i16 v{M(r,d)}, v{M(r,d)}, v{H1(d)}")
        for d in range(4):
            ins.append(f"    v_pk_ashrrev_i16 v{M(r,d)}, s19, v{M(r,d)}")
        for d in range(4):
            ins.append(f"    v_bfi_b32 v{M(r,d)}, v{M(r,d)}, 0, v{R(r,d)}")
        ins.append(f"    ds_write_b128 v{16+r}, {r4(M(r,0))} offset:{wbuf*16384}")
    if NOPRUNE:
        ins = [f"    ds_write_b128 v{16+r}, {r4(R(r,0))} offset:{wbuf*16384}" for r in range(4)] + ["    s_nop 0"] * 4
    if NOW:
        ins = [x if "ds_write" not in x else "    s_nop 0" for x in ins]
    groups = issueX_list() if withX else []
    every = len(ins) // 8
    for n, x in enumerate(ins):
        if groups and n % every == 0:
            for y in groups.pop(0):
                e(y)
        e(x)
    for grp in groups:
        for y in grp:
            e(y)

issueR(0); issueX(); issueR(1); issueX()
e("    s_waitcnt vmcnt(20)")
pruneW(0, 0); issueR(2); issueX(); issueR(0)
e("    s_waitcnt vmcnt(28) lgkmcnt(0)")
e("    s_barrier                               ; B_-1")
e("    s_mov_b32 s31, 0")
e("L_prod_loop:")
for u in range(6):
    pst()
    e("    s_waitcnt vmcnt(24)")
    pst()
    pruneW((u + 1) % 3, (u + 1) & 1, True)
    pst()
    issueR((u + 1) % 3)
    pst()
    e("    s_waitcnt vmcnt(28) lgkmcnt(0)")
    pst()
    e("    s_barrier")
e("""    s_add_u32 s31, s31, 1
    s_cmp_lt_u32 s31, 2
    s_cbranch_scc1 L_prod_loop
""")
e("    s_waitcnt vmcnt(24)")
pruneW(13 % 3, 13 & 1, True)
e("    s_waitcnt vmcnt(24) lgkmcnt(0)")
e("    s_barrier                               ; B_12")
e("    s_waitcnt vmcnt(20)")
pruneW(14 % 3, 14 & 1)
e("    s_waitcnt vmcnt(12) lgkmcnt(0)")
e("    s_barrier                               ; B_13")
e("    s_waitcnt vmcnt(8)")
pruneW(15 % 3, 15 & 1)
e("    s_waitcnt vmcnt(0) lgkmcnt(0)")
e("    s_barrier                               ; B_14")
if PSTAMP:
    e("""    s_cmp_lg_u32 s16, 0
    s_cbranch_scc1 L_done
    s_mov_b32 s20, s12
    s_and_b32 s21, s13, 0xffff
    s_mov_b32 s22, 0x1000000
    s_mov_b32 s23, 0x00020000
    s_lshl_b32 s28, s2, 8
    s_add_u32 s28, s28, 0x400000
    v_lshlrev_b32 v31, 2, v0
    buffer_store_dword v30, v31, s[20:23], s28 offen""")
e("L_done:")
e("    s_endpgm")

e(f""".section .rodata,"a"
.p2align 6
.amdhsa_kernel {KNAME}
  .amdhsa_next_free_vgpr 256
  .amdhsa_next_free_sgpr 64
  .amdhsa_accum_offset 256
  .amdhsa_group_segment_fixed_size 0
  .amdhsa_kernarg_size 48
  .amdhsa_user_sgpr_count 2
  .amdhsa_user_sgpr_kernarg_segment_ptr 1
  .amdhsa_system_sgpr_workgroup_id_x 1
.end_amdhsa_kernel
""")

open(OUT, "w").write("\n".join(L))
print("wrote", OUT)
```

```python
import sys

STAMP = "--stamp" in sys.argv
SKEW = "--noskew" not in sys.argv
BSTAMP = "--bstamp" in sys.argv
PSTAMP = "--pstamp" in sys.argv
QSTAMP = "--qstamp" in sys.argv
FAKEB128 = "--fakeb128" in sys.argv
NOW = "--now" in sys.argv
NOPRUNE = "--noprune" in sys.argv
STP = " nt"
STPB = None
PRIO = 3
for a_ in sys.argv:
    if a_.startswith("--stp="):
        STP = (" " + a_[6:].replace("+", " ")) if a_[6:] else ""
    if a_.startswith("--stpb="):
        STPB = (" " + a_[7:].replace("+", " ")) if a_[7:] else ""
    if a_.startswith("--prio="):
        PRIO = int(a_[7:])
args = [a for a in sys.argv[1:] if not a.startswith("--")]
OUT = args[0] if args else "standalone__structured_sparse_n_m__ragged.s"
KNAME = "standalone__structured_sparse_n_m__ragged_kernel"

L = []
def e(s=""):
    L.append(s)

e(f"""; Kernarg layout for this problem (48 bytes, ptrs only, base s[0:1]):
; @launch grid=(256,1,1) block=(512,1,1) lds=163840
.amdgcn_target "amdgcn-amd-amdhsa--gfx950"
.text
.globl {KNAME}
.p2align 8
.type {KNAME},@function
{KNAME}:""")

WBASE = 131072
ACC = 128
def acc(i4, j):
    b = ACC + (i4 * 2 + j) * 16
    return f"v[{b}:{b+15}]"
def frag_regs(s):
    base = 64 + 24 * s
    W = [base, base + 4]
    X = [base + 8 + 4 * i for i in range(4)]
    return W, X
XA = [8, 9, 10, 11]
WA = [12, 13]
def r4(b):
    return f"v[{b}:{b+3}]"
def r2(b):
    return f"v[{b}:{b+1}]"

e("""    s_cmp_ge_u32 s2, 256
    s_cbranch_scc1 L_done
""")
if QSTAMP:
    e("    s_memtime s[64:65]")
e("""    s_load_dwordx4 s[4:7], s[0:1], 0        ; x, w
    s_load_dwordx4 s[8:11], s[0:1], 16      ; b, out
    s_load_dwordx2 s[12:13], s[0:1], 40     ; ws
    v_lshrrev_b32 v1, 6, v0
    v_and_b32 v0, 63, v0                    ; lane
    s_and_b32 s14, s2, 7                    ; xcd
    s_lshr_b32 s15, s2, 3                   ; idx
    s_lshr_b32 s16, s15, 3
    s_lshl_b32 s14, s14, 2
    s_add_u32 s14, s14, s16                 ; m_tile
    s_and_b32 s15, s15, 7                   ; n_tile
    v_readfirstlane_b32 s16, v1
    s_waitcnt lgkmcnt(0)
    s_cmp_ge_u32 s16, 4
    s_cbranch_scc1 L_producer
""")

if STAMP:
    e("    s_memtime s[40:41]")
    e("    s_memrealtime s[46:47]")
    e("    v_mov_b32 v30, 0")
if PRIO:
    e(f"    s_setprio {PRIO}")
e("""    s_lshr_b32 s17, s16, 1                  ; wm
    s_and_b32 s18, s16, 1                   ; wn
    v_lshrrev_b32 v2, 5, v0                 ; h
    v_and_b32 v3, 31, v0                    ; l&31
    s_mov_b32 s20, s8
    s_and_b32 s21, s9, 0xffff
    s_movk_i32 s22, 0x800
    s_mov_b32 s23, 0x00020000
    s_mov_b32 s24, s10
    s_and_b32 s25, s11, 0xffff
    s_mov_b32 s26, 0x1000000
    s_mov_b32 s27, 0x00020000
    s_lshl_b32 s19, s15, 8
    s_lshl_b32 s28, s18, 7
    s_add_u32 s19, s19, s28                 ; (n_tile*128+wn*64)*2
    v_lshl_add_u32 v4, v2, 5, s19
    buffer_load_dwordx4 v[32:35], v4, s[20:23], 0 offen
    buffer_load_dwordx4 v[36:39], v4, s[20:23], 0 offen offset:16
    buffer_load_dwordx4 v[40:43], v4, s[20:23], 0 offen offset:64
    buffer_load_dwordx4 v[44:47], v4, s[20:23], 0 offen offset:80
    v_bfe_u32 v5, v0, 1, 3                  ; (l>>1)&7
    s_lshl_b32 s28, s17, 14
    v_lshl_add_u32 v6, v3, 7, s28           ; wm*16384 + (l&31)*128
""")
for kk in range(4):
    e(f"    v_or_b32 v7, {2*kk}, v2")
    e(f"    v_xor_b32 v7, v7, v5")
    e(f"    v_lshl_add_u32 v{XA[kk]}, v7, 4, v6")
e(f"""    v_bfe_u32 v5, v0, 2, 2                  ; r
    v_lshl_add_u32 v6, v2, 3, v5            ; 8h + r
    v_lshlrev_b32 v6, 8, v6
    v_add_u32 v6, {WBASE}, v6
    v_and_b32 v7, 1, v0                     ; qi&1
    v_lshlrev_b32 v7, 2, v7                 ; 4*(qi&1)
    v_bfe_u32 v21, v0, 1, 1                 ; (l>>1)&1
    v_bfe_u32 v22, v0, 4, 1                 ; gi
    v_lshl_add_u32 v21, v22, 1, v21         ; qi>>1
    v_add_u32 v7, v7, v21                   ; nq
    v_lshl_add_u32 v6, v7, 3, v6
    s_lshl_b32 s28, s18, 1                  ; 2wn
    v_xor_b32 v7, s28, v5
    v_lshl_add_u32 v{WA[0]}, v7, 6, v6
    s_add_u32 s28, s28, 1
    v_xor_b32 v7, s28, v5
    v_lshl_add_u32 v{WA[1]}, v7, 6, v6
    v_lshlrev_b32 v14, 4, v0
    v_add_u32 v14, {WBASE}, v14
    s_mov_b32 s30, 0
    s_mov_b32 s31, 0
    s_movk_i32 s29, 0x4000                  ; W delta
    s_lshl_b32 s28, s16, 14
    v_and_b32 v5, 7, v0                     ; l&7
    v_lshl_add_u32 v6, v3, 7, s28           ; region + (l&31)*128
    v_lshlrev_b32 v7, 1, v2                 ; 2h
""")
for j in range(2):
    for ee in range(2):
        e(f"    v_or_b32 v21, {4*j+ee}, v7")
        e(f"    v_xor_b32 v21, v21, v5")
        e(f"    v_lshl_add_u32 v{24+j*2+ee}, v21, 4, v6")
e("""    v_lshrrev_b32 v21, 3, v0
    v_and_b32 v22, 7, v21
    v_xor_b32 v22, v22, v5
    v_lshl_add_u32 v28, v21, 7, s28
    v_lshl_add_u32 v28, v22, 4, v28
    v_lshlrev_b32 v29, 11, v21
    v_lshl_add_u32 v29, v5, 4, v29
    s_lshl_b32 s32, s14, 19
    s_lshl_b32 s33, s17, 18
    s_add_u32 s32, s32, s33
    s_add_u32 s32, s32, s19
    s_waitcnt vmcnt(0)
""")
for j in range(2):
    for r in range(16):
        src = 32 + j * 8 + (r >> 1)
        for i4 in range(4):
            d = ACC + (i4 * 2 + j) * 16 + r
            if r & 1:
                e(f"    v_and_b32 v{d}, 0xffff0000, v{src}")
            else:
                e(f"    v_lshlrev_b32 v{d}, 16, v{src}")

def reads(s, kk, i4s=(0, 1, 2, 3), xoff=0, woff=0):
    W, X = frag_regs(s)
    out = []
    out.append(f"    ds_read_b64_tr_b16 {r2(W[0])}, v{WA[0]} offset:{woff+kk*4096}")
    out.append(f"    ds_read_b64_tr_b16 {r2(W[0]+2)}, v{WA[0]} offset:{woff+kk*4096+1024}")
    out.append(f"    ds_read_b128 {r4(X[i4s[0]])}, v{XA[kk]} offset:{xoff+i4s[0]*4096}")
    out.append(f"    ds_read_b64_tr_b16 {r2(W[1])}, v{WA[1]} offset:{woff+kk*4096}")
    out.append(f"    ds_read_b64_tr_b16 {r2(W[1]+2)}, v{WA[1]} offset:{woff+kk*4096+1024}")
    for i4 in i4s[1:]:
        out.append(f"    ds_read_b128 {r4(X[i4])}, v{XA[kk]} offset:{xoff+i4*4096}")
    if FAKEB128:
        out = [o for o in out if "tr_b16" not in o]
        out.insert(0, f"    ds_read_b128 {r4(W[0])}, v14 offset:{woff+kk*4096}")
        out.insert(2, f"    ds_read_b128 {r4(W[1])}, v14 offset:{woff+kk*4096+1024}")
    return out

def step(s, rd, i4s=(0, 1, 2, 3), fill=None, per=None):
    W, X = frag_regs(s)
    order = [(i4, j) for i4 in i4s for j in range(2)]
    rd = list(rd)
    fill = list(fill) if fill else []
    nm = len(order)
    if per is None:
        per = [3, 3, 2] + [0] * 8
    for n, (i4, j) in enumerate(order):
        e(f"    v_mfma_f32_32x32x16_bf16 {acc(i4,j)}, {r4(W[j])}, {r4(X[i4])}, {acc(i4,j)}")
        for _ in range(per[n]):
            if rd:
                e(rd.pop(0))
        if n == nm - 1:
            while rd:
                e(rd.pop(0))
        k = (len(fill) + (nm - n) - 1) // (nm - n) if fill else 0
        for _ in range(k):
            if fill:
                e(fill.pop(0))

if STAMP:
    e("    s_waitcnt lgkmcnt(0)")
    e("    v_writelane_b32 v30, s40, 20")
    e("    v_writelane_b32 v30, s46, 24")
e("    s_barrier")
if STAMP:
    e("    s_memtime s[40:41]")
    e("    s_waitcnt lgkmcnt(0)")
    e("    v_writelane_b32 v30, s40, 21")
for x in reads(0, 0):
    e(x)
def advance():
    e("""    s_add_u32 s30, s30, 0x8000
    s_mov_b32 s28, 0x8000
    s_cmp_eq_u32 s30, 0x20000
    s_cselect_b32 s30, 0, s30
    s_cselect_b32 s28, 0xfffe8000, s28""")
    for j in range(2):
        e(f"    v_add_u32 v{WA[j]}, s29, v{WA[j]}")
    for kk in range(4):
        e(f"    v_add_u32 v{XA[kk]}, s28, v{XA[kk]}")
    e("    s_sub_u32 s29, 0, s29")

NLOOP = 15
if BSTAMP:
    e("    s_mov_b32 s62, 0")
e("L_cons_loop:")
for kk in range(3):
    e("    s_waitcnt lgkmcnt(0)")
    step(kk & 1, reads((kk + 1) & 1, kk + 1))
if BSTAMP:
    e("    s_memtime s[56:57]")
e("    s_waitcnt lgkmcnt(0)")
e("    s_barrier")
if BSTAMP:
    e("    s_memtime s[58:59]")
advance()
if SKEW:
    pass
step(1, reads(0, 0))
if BSTAMP:
    e("    s_waitcnt lgkmcnt(0)")
    e("    s_sub_u32 s58, s58, s56")
    e("    s_add_u32 s62, s62, s58")
e(f"""    s_add_u32 s31, s31, 1
    s_cmp_lt_u32 s31, {NLOOP}
    s_cbranch_scc1 L_cons_loop
""")

def ep_write(i4):
    out = []
    for j in range(2):
        b = ACC + (i4 * 2 + j) * 16
        tb = 32 + ((i4 * 2 + j) & 3) * 8
        for q in range(8):
            out.append(f"    v_cvt_pk_bf16_f32 v{tb+q}, v{b+2*q}, v{b+2*q+1}")
        out.append(f"    ds_write_b128 v{24+j*2}, {r4(tb)} offset:{i4*4096}")
        out.append(f"    ds_write_b128 v{24+j*2+1}, {r4(tb+4)} offset:{i4*4096}")
    return out
def ep_read(i4):
    return [f"    ds_read_b128 {r4(ACC+32*i4+4*q)}, v28 offset:{(i4*4+q)*1024}" for q in range(4)]
def ep_store(i4):
    out = []
    for q in range(4):
        out.append(f"    buffer_store_dwordx4 {r4(ACC+32*i4+4*q)}, v29, s[24:27], s32 offen{STP if (i4 < 2 or STPB is None) else STPB}")
        out.append(f"    s_add_u32 s32, s32, 16384")
    return out

if not SKEW:
    for kk in range(3):
        e("    s_waitcnt lgkmcnt(0)")
        step(kk & 1, reads((kk + 1) & 1, kk + 1))
    e("    s_waitcnt lgkmcnt(0)")
    step(1, [])
    if STAMP:
        e("    s_memtime s[40:41]")
        e("    s_waitcnt lgkmcnt(0)")
        e("    v_writelane_b32 v30, s40, 22")
    e("    s_nop 7\n    s_nop 7")
    for i4 in range(4):
        for x in ep_write(i4) + ep_read(i4):
            e(x)
        if i4:
            e("    s_waitcnt lgkmcnt(8)")
            for x in ep_store(i4 - 1):
                e(x)
    e("    s_waitcnt lgkmcnt(0)")
    for x in ep_store(3):
        e(x)
else:
    A = (0, 1); B = (2, 3)
    for idx in range(4):
        s = idx & 1
        e("    s_waitcnt lgkmcnt(0)")
        nxt = reads(s ^ 1, idx + 1, A) if idx < 3 else reads(s ^ 1, 0, B)
        step(s, nxt, A, per=[3, 3, 0, 0])
    fills = {
        0: ["    s_nop 7", "    s_nop 3"] + ep_write(0),
        1: ep_write(1) + ep_read(0),
        2: ep_read(1) + ep_store(0),
        3: ep_store(1),
    }
    for idx in range(4):
        s = idx & 1
        e("    s_waitcnt lgkmcnt(0)")
        nxt = reads(s ^ 1, idx + 1, B) if idx < 3 else []
        step(s, nxt, B, fill=fills[idx], per=[3, 3, 0, 0])
    if STAMP:
        e("    s_memtime s[40:41]")
        e("    s_waitcnt lgkmcnt(0)")
        e("    v_writelane_b32 v30, s40, 22")
    e("    s_nop 7\n    s_nop 7")
    for x in ep_write(2) + ep_read(2) + ep_write(3) + ep_read(3):
        e(x)
    e("    s_waitcnt lgkmcnt(8)")
    for x in ep_store(2):
        e(x)
    e("    s_waitcnt lgkmcnt(0)")
    for x in ep_store(3):
        e(x)
if STAMP:
    e("""    s_waitcnt vmcnt(0)
    s_memtime s[40:41]
    s_memrealtime s[46:47]
    s_waitcnt lgkmcnt(0)
    v_writelane_b32 v30, s40, 23
    v_writelane_b32 v30, s46, 25
    v_writelane_b32 v30, s62, 26
    s_cmp_lg_u32 s16, 0
    s_cbranch_scc1 L_nostamp
    s_mov_b32 s20, s12
    s_and_b32 s21, s13, 0xffff
    s_mov_b32 s22, 0x1000000
    s_mov_b32 s23, 0x00020000
    s_lshl_b32 s28, s2, 8
    s_add_u32 s28, s28, 0x400000
    v_lshlrev_b32 v31, 2, v0
    buffer_store_dword v30, v31, s[20:23], s28 offen
L_nostamp:""")
e("    s_endpgm")

e("L_producer:")
if QSTAMP:
    e("    s_memtime s[66:67]")
e(f"""    s_sub_u32 s16, s16, 4                   ; p (0..3)
    s_mov_b32 s48, s4
    s_and_b32 s49, s5, 0xffff
    s_mov_b32 s50, 0x1000000
    s_mov_b32 s51, 0x00020000
    s_mov_b32 s52, s6
    s_and_b32 s53, s7, 0xffff
    s_mov_b32 s54, 0x200000
    s_mov_b32 s55, 0x00020000
    s_mov_b32 s19, 0x000f000f
    v_lshrrev_b32 v2, 3, v0
    v_lshlrev_b32 v2, 11, v2
    v_and_b32 v3, 7, v0
    v_lshrrev_b32 v4, 4, v0                 ; L>>4 (0..3)
    v_xor_b32 v5, v3, v4
    v_lshl_add_u32 v8, v5, 4, v2            ; even
    v_or_b32 v6, 4, v4
    v_xor_b32 v5, v3, v6
    v_lshl_add_u32 v9, v5, 4, v2            ; odd
    s_lshl_b32 s28, s16, 2
    v_add_u32 v5, s28, v4                   ; g
    v_and_b32 v6, 15, v0                    ; c
    v_lshlrev_b32 v10, 13, v5
    v_lshl_add_u32 v10, v6, 4, v10
    v_add_u32 v11, 0x1000, v10
    v_lshrrev_b32 v7, 2, v6                 ; c>>2
    v_and_b32 v12, 3, v6
    v_lshlrev_b32 v12, 4, v12
    v_lshl_add_u32 v12, v5, 10, v12
    v_add_u32 v12, {WBASE}, v12
""")
for r in range(4):
    e(f"    v_xor_b32 v13, {r}, v7")
    e(f"    v_lshl_add_u32 v{16+r}, v13, 6, v12")
    if r:
        e(f"    v_add_u32 v{16+r}, {r*256}, v{16+r}")
e("""    s_lshl_b32 s32, s14, 19
    s_lshl_b32 s33, s16, 17
    s_add_u32 s32, s32, s33
    s_lshl_b32 s33, s15, 8
    s_lshl_b32 s35, s16, 13
    s_mov_b32 s30, 0
""")
def pst():
    if PSTAMP:
        e("    s_memtime s[40:41]")
        e("    s_waitcnt lgkmcnt(0)")
        e("    s_mov_b32 s61, m0")
        e("    s_mov_b32 m0, s60")
        e("    s_nop 3")
        e("    v_writelane_b32 v30, s40, m0")
        e("    s_add_u32 s60, s60, 1")
        e("    s_min_u32 s60, s60, 63")
        e("    s_mov_b32 m0, s61")
if PSTAMP:
    e("    s_mov_b32 s60, 0")
    e("    v_mov_b32 v30, 0")
RS = [64, 80, 96]
TMP = 112
def issueX_list():
    g = []
    g.append(["    s_add_u32 m0, s30, s35", "    s_mov_b32 s37, s32", f"    buffer_load_dwordx4 v8, s[48:51], s37 offen lds"])
    for i in range(1, 8):
        g.append(["    s_add_u32 m0, m0, 0x400", "    s_add_u32 s37, s37, 0x4000", f"    buffer_load_dwordx4 v{8+(i&1)}, s[48:51], s37 offen lds"])
    g[-1] += ["    s_add_u32 s32, s32, 128", "    s_add_u32 s30, s30, 0x8000", "    s_and_b32 s30, s30, 0x1ffff"]
    return g
def issueX():
    for grp in issueX_list():
        for x in grp:
            e(x)
def issueR(st):
    b = RS[st]
    e(f"    buffer_load_dwordx4 {r4(b)}, v10, s[52:55], s33 offen")
    e(f"    buffer_load_dwordx4 {r4(b+4)}, v10, s[52:55], s33 offen offset:2048")
    e(f"    buffer_load_dwordx4 {r4(b+8)}, v11, s[52:55], s33 offen")
    e(f"    buffer_load_dwordx4 {r4(b+12)}, v11, s[52:55], s33 offen offset:2048")
    e("    s_add_u32 s33, s33, 0x20000")
def pruneW(st, wbuf, withX=False):
    b = RS[st]
    R = lambda r, d: b + 4 * r + d
    M = lambda r, d: TMP + 4 * r + d
    H1 = lambda d: TMP + 16 + d
    L1 = lambda d: TMP + 20 + d
    H2 = lambda d: TMP + 24 + d
    L2 = lambda d: TMP + 28 + d
    ins = []
    for r in range(4):
        for d in range(4):
            ins.append(f"    v_and_b32 v{M(r,d)}, 0x7fff7fff, v{R(r,d)}")
    for d in range(4):
        ins.append(f"    v_pk_max_u16 v{H1(d)}, v{M(0,d)}, v{M(1,d)}")
    for d in range(4):
        ins.append(f"    v_pk_min_u16 v{L1(d)}, v{M(0,d)}, v{M(1,d)}")
    for d in range(4):
        ins.append(f"    v_pk_max_u16 v{H2(d)}, v{M(2,d)}, v{M(3,d)}")
    for d in range(4):
        ins.append(f"    v_pk_min_u16 v{L2(d)}, v{M(2,d)}, v{M(3,d)}")
    for d in range(4):
        ins.append(f"    v_pk_min_u16 v{H1(d)}, v{H1(d)}, v{H2(d)}")
    for d in range(4):
        ins.append(f"    v_pk_max_u16 v{L1(d)}, v{L1(d)}, v{L2(d)}")
    for d in range(4):
        ins.append(f"    v_pk_max_u16 v{H1(d)}, v{H1(d)}, v{L1(d)}")
    for r in range(4):
        for d in range(4):
            ins.append(f"    v_pk_sub_i16 v{M(r,d)}, v{M(r,d)}, v{H1(d)}")
        for d in range(4):
            ins.append(f"    v_pk_ashrrev_i16 v{M(r,d)}, s19, v{M(r,d)}")
        for d in range(4):
            ins.append(f"    v_bfi_b32 v{M(r,d)}, v{M(r,d)}, 0, v{R(r,d)}")
        ins.append(f"    ds_write_b128 v{16+r}, {r4(M(r,0))} offset:{wbuf*16384}")
    if NOPRUNE:
        ins = [f"    ds_write_b128 v{16+r}, {r4(R(r,0))} offset:{wbuf*16384}" for r in range(4)] + ["    s_nop 0"] * 4
    if NOW:
        ins = [x if "ds_write" not in x else "    s_nop 0" for x in ins]
    groups = issueX_list() if withX else []
    every = len(ins) // 8
    for n, x in enumerate(ins):
        if groups and n % every == 0:
            for y in groups.pop(0):
                e(y)
        e(x)
    for grp in groups:
        for y in grp:
            e(y)

if QSTAMP:
    e("    s_memtime s[68:69]")
issueR(0); issueX(); issueR(1); issueX()
if QSTAMP:
    e("    s_memtime s[70:71]")
e("    s_waitcnt vmcnt(20)")
if QSTAMP:
    e("    s_memtime s[72:73]")
pruneW(0, 0); issueR(2); issueX(); issueR(0)
if QSTAMP:
    e("    s_memtime s[74:75]")
e("    s_waitcnt vmcnt(28) lgkmcnt(0)")
if QSTAMP:
    e("    s_memtime s[76:77]")
e("    s_barrier                               ; B_-1")
if QSTAMP:
    e("    s_memtime s[78:79]")
    e("    s_waitcnt lgkmcnt(0)")
    e("    v_mov_b32 v30, 0")
    for q in range(8):
        e(f"    v_writelane_b32 v30, s{64+2*q}, {q}")
e("    s_mov_b32 s31, 0")
e("L_prod_loop:")
for u in range(6):
    pst()
    e("    s_waitcnt vmcnt(24)")
    pst()
    pruneW((u + 1) % 3, (u + 1) & 1, True)
    pst()
    issueR((u + 1) % 3)
    pst()
    e("    s_waitcnt vmcnt(28) lgkmcnt(0)")
    pst()
    e("    s_barrier")
e("""    s_add_u32 s31, s31, 1
    s_cmp_lt_u32 s31, 2
    s_cbranch_scc1 L_prod_loop
""")
e("    s_waitcnt vmcnt(24)")
pruneW(13 % 3, 13 & 1, True)
e("    s_waitcnt vmcnt(24) lgkmcnt(0)")
e("    s_barrier                               ; B_12")
e("    s_waitcnt vmcnt(20)")
pruneW(14 % 3, 14 & 1)
e("    s_waitcnt vmcnt(12) lgkmcnt(0)")
e("    s_barrier                               ; B_13")
e("    s_waitcnt vmcnt(8)")
pruneW(15 % 3, 15 & 1)
e("    s_waitcnt vmcnt(0) lgkmcnt(0)")
e("    s_barrier                               ; B_14")
if PSTAMP or QSTAMP:
    e("""    s_cmp_lg_u32 s16, 0
    s_cbranch_scc1 L_done
    s_mov_b32 s20, s12
    s_and_b32 s21, s13, 0xffff
    s_mov_b32 s22, 0x1000000
    s_mov_b32 s23, 0x00020000
    s_lshl_b32 s28, s2, 8
    s_add_u32 s28, s28, 0x400000
    v_lshlrev_b32 v31, 2, v0
    buffer_store_dword v30, v31, s[20:23], s28 offen""")
e("L_done:")
e("    s_endpgm")

e(f""".section .rodata,"a"
.p2align 6
.amdhsa_kernel {KNAME}
  .amdhsa_next_free_vgpr 256
  .amdhsa_next_free_sgpr 96
  .amdhsa_accum_offset 256
  .amdhsa_group_segment_fixed_size 0
  .amdhsa_kernarg_size 48
  .amdhsa_user_sgpr_count 2
  .amdhsa_user_sgpr_kernarg_segment_ptr 1
  .amdhsa_system_sgpr_workgroup_id_x 1
.end_amdhsa_kernel
""")

open(OUT, "w").write("\n".join(L))
print("wrote", OUT)
```
